```python
import torch

def _softmax(x, axis=-1):
    return torch.softmax(x, dim=axis)
def _gelu(x):
    return torch.nn.functional.gelu(x, approximate="tanh")
def _silu(x):
    return torch.nn.functional.silu(x)
def _sigmoid(x):
    return torch.sigmoid(x)
def _layernorm(x, axis=-1, eps=1e-5):
    m = x.mean(dim=axis, keepdim=True)
    v = x.var(dim=axis, keepdim=True, unbiased=False)
    return (x - m) / torch.sqrt(v + eps)
def _scatter_add(tgt, idx, src, axis=0):
    return tgt.clone().index_add_(axis, idx, src)
def _segment_sum(src, seg, n):
    out = torch.zeros((n,) + src.shape[1:], dtype=src.dtype)
    return out.index_add_(0, seg, src)
def _pad(x, pw):
    flat = tuple(v for pair in reversed(pw) for v in pair)
    return torch.nn.functional.pad(x, flat)

kernel_name = 'recurrent_scan__linear_attn_block__mixer_s_mlp__prompt'

def setup_inputs():

    _w = (lambda a: (lambda t: t.to(torch.bfloat16) if t.is_floating_point() else t)(torch.as_tensor(a)))
    def _A_setup():
        B, S, D = 1, 2048, 512
        return {
            "x": _w((lambda *s: torch.randn(*s, dtype=torch.bfloat16) * 0.05)(B, S, D)),
            "wqkv": _w((lambda *s: torch.randn(*s, dtype=torch.bfloat16) * 0.05)(D, 3 * D)),
            "wo": _w((lambda *s: torch.randn(*s, dtype=torch.bfloat16) * 0.05)(D, D)),
        }
    _A_in = _A_setup()

    def _B_setup():
        B, S, D, F = 1, 2048, 512, 1792
        return {
            "x":  _w((lambda *s: torch.randn(*s, dtype=torch.bfloat16) * 0.05)(B, S, D)),
            "w1": _w((lambda *s: torch.randn(*s, dtype=torch.bfloat16) * 3.2)(D, D) * (D ** -0.5)),
            "w2": _w((lambda *s: torch.randn(*s, dtype=torch.bfloat16) * 3.2)(D, D) * (D ** -0.5)),
            "w3": _w((lambda *s: torch.randn(*s, dtype=torch.bfloat16) * 3.2)(D, F) * (D ** -0.5)),
            "w4": _w((lambda *s: torch.randn(*s, dtype=torch.bfloat16) * 1.6)(F, D) * (F ** -0.5)),
        }
    _B_in = _B_setup()

    return {
        "A_x": _A_in["x"],
        "A_wqkv": _A_in["wqkv"],
        "A_wo": _A_in["wo"],
        "B_x": _B_in["x"],
        "B_w1": _B_in["w1"],
        "B_w2": _B_in["w2"],
        "B_w3": _B_in["w3"],
        "B_w4": _B_in["w4"],
    }

def reference(A_x, A_wqkv, A_wo, B_x, B_w1, B_w2, B_w3, B_w4):
    def _A_ref(x, wqkv, wo):
        B, S, D = x.shape
        H = 32; Dh = D // H
        qkv = (lambda x, *d: x.permute(*d))((x @ wqkv).reshape(B, S, 3, H, Dh), 2, 0, 3, 1, 4)
        q, k, v = qkv[0], qkv[1], qkv[2]
        phi = lambda t: torch.where(t > 0, t + 1, torch.exp(t)) + 1e-6
        pq, pk = phi(q), phi(k)
        kv = torch.einsum("bhsd,bhse->bhde", pk, v)
        z = torch.einsum("bhsd->bhd", pk)
        num = torch.einsum("bhqd,bhde->bhqe", pq, kv)
        den = torch.einsum("bhqd,bhd->bhq", pq, z)[..., None] + 1e-6
        o = num / den
        return (lambda x, *d: x.permute(*d))(o, 0, 2, 1, 3).reshape(B, S, D) @ wo

    def _B_ref(x, w1, w2, w3, w4):
        B, S, D = x.shape
        h = _gelu(_layernorm(x, axis=-1) @ w1)
        c = D // 4
        g0 = _pad(h[:, :, 0*c:1*c], ((0, 0), (1, 0), (0, 0)))[:, :S, :]
        g1 = _pad(h[:, :, 1*c:2*c], ((0, 0), (0, 1), (0, 0)))[:, 1:, :]
        g2 = _pad(h[:, :, 2*c:3*c], ((0, 0), (2, 0), (0, 0)))[:, :S, :]
        g3 = _pad(h[:, :, 3*c:   ], ((0, 0), (0, 2), (0, 0)))[:, 2:, :]
        hs = torch.concatenate([g0, g1, g2, g3], axis=-1) @ w2
        x1 = x + hs
        h2 = _gelu(_layernorm(x1, axis=-1) @ w3) @ w4
        return x1 + h2

    x = A_x
    xn = _layernorm(x, axis=-1)
    s = _A_ref(xn, A_wqkv, A_wo)
    g = _silu(_B_ref(xn, B_w1, B_w2, B_w3, B_w4))
    return x + s * g
```

```python
import re

def _regs(tok):
    tok = tok.strip()
    neg = tok.lstrip('-|').rstrip('|')
    m = re.fullmatch(r'([vsa])(\d+)', neg)
    if m: return [(m.group(1), int(m.group(2)))]
    m = re.fullmatch(r'([vsa])\[(\d+):(\d+)\]', neg)
    if m: return [(m.group(1), i) for i in range(int(m.group(2)), int(m.group(3)) + 1)]
    if neg == 'vcc': return [('s', 'vcc')]
    if neg in ('vcc_lo', 'vcc_hi'): return [('s', 'vcc')]
    if neg == 'exec': return [('s', 'exec')]
    if neg == 'm0': return [('s', 'm0')]
    if neg == 'scc': return [('s', 'scc')]
    return []

TRANS = ('v_exp_f32', 'v_log_f32', 'v_rcp_f32', 'v_rsq_f32', 'v_sqrt_f32', 'v_sin_f32', 'v_cos_f32')

class Ins:
    __slots__ = ('text', 'op', 'dst', 'src', 'kind', 'passes', 'srcC', 'isdpp', 'wide_store_data', 'lds_dma', 'srcAB')
    def __init__(self, text):
        self.text = text
        t = text.split(';')[0].strip()
        parts = t.split(None, 1)
        self.op = parts[0]
        rest = parts[1] if len(parts) > 1 else ''
        ops = [o.strip() for o in re.split(r',(?![^\[]*\])', rest)] if rest else []
        mods = ''
        if ops:
            sp = ops[-1].split(None, 1)
            if len(sp) > 1 and not ops[-1].startswith('hwreg'):
                ops[-1] = sp[0]; mods = sp[1]
            elif len(sp) == 1 and sp[0] in ('offen', 'lds'):
                pass
        op = re.sub(r'_e(32|64)$', '', self.op)
        self.op = op
        self.dst = []; self.src = []; self.kind = 'other'; self.passes = 0; self.srcC = []; self.srcAB = []
        self.isdpp = ('row_' in mods or 'quad_perm' in mods or 'wave_' in mods or '_dpp' in op or 'row_' in rest)
        self.wide_store_data = []; self.lds_dma = False
        R = lambda i: _regs(ops[i]) if i < len(ops) else []
        allsrc = lambda a: [r for i in range(a, len(ops)) for r in _regs(ops[i])]
        if op.startswith('v_mfma'):
            self.kind = 'mfma'
            self.dst = R(0); self.srcAB = R(1) + R(2); self.srcC = R(3); self.src = self.srcAB + self.srcC
            if '32x32x16' in op or '32x32x8' in op: self.passes = 8
            elif '16x16x32' in op or '16x16x16' in op: self.passes = 4
            elif '4x4x4' in op: self.passes = 2
            else: raise ValueError('mfma passes? ' + op)
        elif op.startswith('v_'):
            self.kind = 'valu'
            if op.startswith('v_cmp'):
                self.dst = R(0); self.src = allsrc(1)
            elif op.startswith('v_readfirstlane') or op.startswith('v_readlane'):
                self.dst = R(0); self.src = allsrc(1)
            elif 'permlane' in op and 'swap' in op:
                self.dst = R(0) + R(1); self.src = R(0) + R(1)
            elif op.startswith('v_add_co') or op.startswith('v_sub_co') or op.startswith('v_addc_co') or op.startswith('v_subb_co'):
                self.dst = R(0) + R(1); self.src = allsrc(2)
            elif op.startswith('v_cndmask'):
                self.dst = R(0); self.src = allsrc(1)
                if len(ops) == 3: self.src += [('s', 'vcc')]
            elif op.startswith(('v_fmac', 'v_mac', 'v_dot2c', 'v_pk_fmac', 'v_dot4c', 'v_dot8c')):
                self.dst = R(0); self.src = allsrc(0)
            elif op.startswith('v_nop'):
                pass
            else:
                self.dst = R(0); self.src = allsrc(1)
            if self.isdpp: self.src += R(0)
        elif op.startswith('ds_'):
            self.kind = 'ds'
            if op.startswith('ds_read') or op.startswith('ds_bpermute') or op.startswith('ds_permute') or op.startswith('ds_swizzle') or '_rtn' in op:
                self.dst = R(0); self.src = allsrc(1)
            else:
                self.src = allsrc(0)
        elif op.startswith('buffer_') or op.startswith('global_') or op.startswith('flat_'):
            self.kind = 'vmem'
            islds = bool(re.search(r'\blds\b', rest)) or '_lds_' in op
            if op in ('buffer_wbl2', 'buffer_inv'):
                pass
            elif islds:
                self.lds_dma = True; self.src = allsrc(0) + [('s', 'm0')]
            elif 'load' in op:
                self.dst = R(0); self.src = allsrc(1)
            elif 'store' in op:
                self.src = allsrc(0)
                d = R(0) if op.startswith('buffer_') else R(1)
                if 'x3' in op or 'x4' in op: self.wide_store_data = d
            elif 'atomic' in op:
                if re.search(r'\bsc0\b', rest):
                    self.dst = R(0)
                self.src = allsrc(0)
            else:
                raise ValueError('vmem? ' + text)
        elif op.startswith('s_'):
            self.kind = 'salu'
            if op in ('s_waitcnt', 's_barrier', 's_nop', 's_endpgm', 's_branch', 's_setprio', 's_sleep') or op.startswith('s_cbranch'):
                self.kind = 'ctl'
            elif op.startswith('s_cmp') or op.startswith('s_bitcmp'):
                self.src = allsrc(0); self.dst = [('s', 'scc')]
            elif op.startswith('s_load') or op in ('s_memtime', 's_memrealtime'):
                self.kind = 'smem'; self.dst = R(0); self.src = allsrc(1)
            elif 'saveexec' in op:
                self.dst = R(0) + [('s', 'exec')]; self.src = allsrc(1) + [('s', 'exec')]
            else:
                self.dst = R(0); self.src = allsrc(1)
        else:
            raise ValueError('unknown instr: ' + text)

    def states(self):
        if self.op == 's_nop':
            return int(self.text.split()[1], 0) + 1
        return 1

def required(prev, cur):
    need = 0
    pd = set(prev.dst)
    vd = {r for r in pd if r[0] in 'va'}
    sd = {r for r in pd if r[0] == 's'}
    cs = set(cur.src); cd = set(cur.dst)
    if prev.kind == 'mfma':
        p = prev.passes
        ov = {2: 4, 4: 6, 8: 10}[p]; ab = {2: 5, 4: 8, 8: 12}[p]
        if cur.kind == 'mfma':
            if vd & set(cur.srcAB): need = max(need, ab)
            if vd & set(cur.srcC):
                if cur.srcC == prev.dst and cur.passes == p: need = max(need, 2 if p == 2 else 0)
                else: need = max(need, ov)
            elif vd & cd:
                need = max(need, ov)
        elif cur.kind in ('valu', 'ds', 'vmem'):
            if vd & (cs | cd): need = max(need, ab)
        if cur.kind == 'valu' and set(prev.srcC) & cd:
            need = max(need, {2: 1, 4: 3, 8: 7}[p])
    if prev.kind == 'valu':
        if cur.kind == 'mfma' and vd & cs: need = max(need, 3 if prev.op.startswith('v_dot') else 2)
        if cur.kind == 'vmem' and sd & cs: need = max(need, 5)
        if cur.kind == 'valu':
            if sd & cs: need = max(need, 2)
            if ('readlane' in cur.op or 'readfirstlane' in cur.op) and vd & cs: need = max(need, 1)
            if 'readlane' in cur.op and sd & cs: need = max(need, 4)
            if 'permlane' in cur.op and vd & cs: need = max(need, 2)
            if cur.isdpp and vd & cs: need = max(need, 2)
            if prev.op in TRANS and vd & cs: need = max(need, 1)
            if prev.op.startswith('v_dot') and (vd & (cs | cd)):
                same = (cur.op == prev.op)
                if same:
                    t = cur.text.split(';')[0]
                    ops = [o.strip() for o in re.split(r',(?![^\[]*\])', t.split(None, 1)[1])]
                    if cur.op.startswith('v_dot2c'):
                        ab_ = set(_regs(ops[1]) + _regs(ops[2]))
                    else:
                        ab_ = set(_regs(ops[1]) + _regs(ops[2]))
                    if vd & ab_: need = max(need, 3)
                else:
                    need = max(need, 3)
        if prev.op.startswith('v_dot') and cur.kind in ('ds', 'vmem') and vd & cs: need = max(need, 3)
        if ('s', 'exec') in sd and cur.kind in ('valu', 'mfma'): need = max(need, 5)
    if prev.kind in ('salu',) and ('s', 'm0') in pd and cur.lds_dma: need = max(need, 1)
    if prev.wide_store_data:
        w = set(prev.wide_store_data)
        if cur.kind == 'valu' and w & cd: need = max(need, 2)
        elif cur.kind in ('ds', 'vmem', 'mfma') and w & cd: need = max(need, 1 if cur.kind != 'mfma' else 2)
    return need

class Prog:
    def __init__(self):
        self.items = []
    def __call__(self, s):
        for line in s.split('\n'):
            line = line.strip()
            if not line or line.startswith(';'):
                continue
            if line.endswith(':') or line.startswith('.'):
                self.items.append(line)
            else:
                self.items.append(Ins(line))
    def raw(self, s): self.items.append(s)
    def label(self, l): self.items.append(l + ':')
    def finish(self):
        out = []
        windows = [[]]
        pending = {}
        since_merge = 0
        def need_for(win, it):
            need = 0; dist = 0
            for prev in reversed(win):
                r = required(prev, it)
                if r > dist: need = max(need, r - dist)
                dist += prev.states()
                if dist >= 14: break
            return need
        def push(ins):
            for w in windows:
                w.append(ins)
                if len(w) > 40: del w[:20]
        for it in self.items:
            if isinstance(it, str):
                out.append(it)
                if it.endswith(':'):
                    lab = it[:-1]
                    for snap in pending.pop(lab, []):
                        windows.append(list(snap)); since_merge = 0
                continue
            need = max(need_for(w, it) for w in windows)
            while need > 0:
                n = min(need, 8)
                nop = Ins('s_nop %d' % (n - 1)); out.append('    ' + nop.text); push(nop); need -= n
            out.append('    ' + it.text); push(it)
            since_merge += 1
            if len(windows) > 1 and since_merge > 16: windows = [windows[0]]
            if it.op.startswith('s_cbranch') or it.op == 's_branch':
                lab = it.text.split(';')[0].split()[1]
                pending.setdefault(lab, []).append(list(windows[0]))
                for w in windows[1:]: pending[lab].append(list(w))
                if it.op == 's_branch': windows = [[]]
            if it.op == 's_endpgm': windows = [[]]
        return '\n'.join(out) + '\n'

class RegAlloc:
    def __init__(self, prefix, start, limit):
        self.p = prefix; self.n = start; self.limit = limit; self.hi = start
    def alloc(self, n=1, align=None):
        if align is None: align = 2 if (n >= 2 and self.p == 'v') else (4 if n >= 4 else (2 if n == 2 else 1))
        self.n = (self.n + align - 1) // align * align
        r = self.n; self.n += n; self.hi = max(self.hi, self.n)
        assert self.n <= self.limit, 'out of %s regs' % self.p
        return r
    def mark(self): return self.n
    def release(self, m): self.n = m

def vr(b, n=1): return 'v%d' % b if n == 1 else 'v[%d:%d]' % (b, b + n - 1)
def sr(b, n=1): return 's%d' % b if n == 1 else 's[%d:%d]' % (b, b + n - 1)
```

```python
import sys, os
sys.path.insert(0, os.path.dirname(os.path.abspath(__file__)))
from asmlib import *

KN = "recurrent_scan__linear_attn_block__mixer_s_mlp__prompt"
WS_PQ   = 0x000000
WS_H    = 0x200000
WS_X1   = 0x400000
WS_ACT  = 0x600000
WS_O    = 0xD00000
WS_ST0  = 0xF00000
WS_KVP  = 0xF10000
WS_KV   = 0xFA0000
WS_X1ST = 0xFB0000
WS_SIZE = 0xFE0000

EPS = 1e-5
LOG2E = 1.4426950408889634
import struct
def f2u(x): return struct.unpack('<I', struct.pack('<f', x))[0]
def fl(x): return '0x%08x' % f2u(x)

class Kern:
    def __init__(self, name, nwg, lds, threads=512):
        self.name = name; self.nwg = nwg; self.lds = lds; self.threads = threads
        self.p = Prog()
        self.v = RegAlloc('v', 1, 256)
        self.s = RegAlloc('s', 3, 100)
        self.uid = 0
    def L(self, base):
        self.uid += 1
        return '%s_%s_%d' % (self.name[:6].strip('_'), base, self.uid)
    def header(self):
        p = self.p
        p.raw('.globl %s\n.p2align 8\n.type %s,@function' % (self.name, self.name))
        p.label(self.name)
        self.end = 'END_' + self.name[:12]
        p('s_cmp_ge_u32 s2, %d' % self.nwg)
        p('s_cbranch_scc1 %s' % self.end)
    def footer(self):
        self.p.label(self.end)
        self.p('s_endpgm')
    def desc(self):
        nv = max(self.v.hi, 8); nv = (nv + 7) // 8 * 8
        return ('.p2align 6\n.amdhsa_kernel %s\n  .amdhsa_next_free_vgpr %d\n  .amdhsa_next_free_sgpr %d\n'
                '  .amdhsa_accum_offset %d\n  .amdhsa_group_segment_fixed_size 0\n  .amdhsa_kernarg_size 88\n'
                '  .amdhsa_user_sgpr_count 2\n  .amdhsa_user_sgpr_kernarg_segment_ptr 1\n'
                '  .amdhsa_system_sgpr_workgroup_id_x 1\n.end_amdhsa_kernel\n') % (self.name, nv, 100, nv)
    def srd(self, ptr_pair, size, dst=None):
        p = self.p
        d = self.s.alloc(4, 4) if dst is None else dst
        p('s_mov_b32 s%d, s%d' % (d, ptr_pair))
        p('s_mov_b32 s%d, s%d' % (d + 1, ptr_pair + 1))
        p('s_mov_b32 s%d, 0x%x' % (d + 2, size))
        p('s_mov_b32 s%d, 0x20000' % (d + 3))
        return d
    def round_bf16(self, dst, src, tmp):
        p = self.p
        p('v_cvt_pk_bf16_f32 v%d, v%d, v%d' % (tmp, src, src))
        p('v_lshlrev_b32 v%d, 16, v%d' % (dst, tmp))

class AddrSet:
    def __init__(self, k, regs):
        self.k = k; self.regs = regs; self.cur = 0
    def off(self, want_lo, span):
        if want_lo - self.cur < 0 or want_lo + span - self.cur > 65536:
            d = want_lo - self.cur
            for r in self.regs:
                self.k.p('v_add_u32 v%d, 0x%x, v%d' % (r, d & 0xffffffff, r))
            self.cur = want_lo
    def imm(self, o):
        r = o - self.cur
        assert 0 <= r < 65536, r
        return r

def stats_finalize(k, S, Q, n, out_mean, out_rs, t0, t1, t2, w1=None):
    p = k.p
    p('v_mul_f32 v%d, %s, v%d' % (S, fl(1.0 / n), S))
    p('v_mul_f32 v%d, %s, v%d' % (Q, fl(1.0 / n), Q))
    p('v_fma_f32 v%d, -v%d, v%d, v%d' % (Q, S, S, Q))
    p('v_max_f32 v%d, 0, v%d' % (Q, Q))
    k.round_bf16(out_mean, S, t0)
    k.round_bf16(t1, Q, t0)
    p('v_add_f32 v%d, %s, v%d' % (t1, fl(EPS), t1))
    k.round_bf16(t1, t1, t0)
    p('v_sqrt_f32 v%d, v%d' % (t1, t1))
    k.round_bf16(t1, t1, t0)
    p('v_rcp_f32 v%d, v%d' % (out_rs, t1))
    if w1 is not None:
        m_eff, sc_eff = w1
        p('v_mul_f32 v%d, v%d, v%d' % (t2, out_rs, out_rs))
        p('v_mul_f32 v%d, v%d, v%d' % (t2, t2, Q))
        k.round_bf16(t2, t2, t0)
        p('v_add_f32 v%d, %s, v%d' % (t2, fl(EPS), t2))
        k.round_bf16(t2, t2, t0)
        p('v_sqrt_f32 v%d, v%d' % (t2, t2))
        k.round_bf16(t2, t2, t0)
        p('v_rcp_f32 v%d, v%d' % (t2, t2))
        p('v_mul_f32 v%d, v%d, v%d' % (sc_eff, t2, out_rs))
        p('v_sub_f32 v%d, v%d, v%d' % (t2, S, out_mean))
        p('v_mul_f32 v%d, v%d, v%d' % (t2, t2, out_rs))
        k.round_bf16(t2, t2, t0)
        p('v_fma_f32 v%d, v%d, v%d, v%d' % (m_eff, t2, t1, out_mean))

GC1 = -2.0 * 0.7978845608028654 * LOG2E
GC3 = GC1 * 0.044715
def gelu(k, u, t):
    p = k.p
    p('v_mul_f32 v%d, v%d, v%d' % (t, u, u))
    p('v_fma_f32 v%d, v%d, s%d, v%d' % (t, t, k.sGC3, k.vGC1))
    p('v_mul_f32 v%d, v%d, v%d' % (t, t, u))
    p('v_exp_f32 v%d, v%d' % (t, t))
    p('v_add_f32 v%d, 1.0, v%d' % (t, t))
    p('v_rcp_f32 v%d, v%d' % (t, t))
    p('v_mul_f32 v%d, v%d, v%d' % (u, u, t))

def gelu_multi(k, us, ts):
    p = k.p
    for u, t in zip(us, ts): p('v_mul_f32 v%d, v%d, v%d' % (t, u, u))
    for u, t in zip(us, ts): p('v_fma_f32 v%d, v%d, s%d, v%d' % (t, t, k.sGC3, k.vGC1))
    for u, t in zip(us, ts): p('v_mul_f32 v%d, v%d, v%d' % (t, t, u))
    for u, t in zip(us, ts): p('v_exp_f32 v%d, v%d' % (t, t))
    for u, t in zip(us, ts): p('v_add_f32 v%d, 1.0, v%d' % (t, t))
    for u, t in zip(us, ts): p('v_rcp_f32 v%d, v%d' % (t, t))
    for u, t in zip(us, ts): p('v_mul_f32 v%d, v%d, v%d' % (u, u, t))

def lane_wave(k):
    p = k.p
    vl = k.v.alloc(); sw = k.s.alloc()
    p('v_lshrrev_b32 v%d, 6, v0' % vl)
    p('v_readfirstlane_b32 s%d, v%d' % (sw, vl))
    p('v_and_b32 v%d, 63, v0' % vl)
    return vl, sw

def big_gemm(k, nst, nslots, issue, xa, wa, xfrag_natural, normal_orient, acc, stat_x, cs, vones, fr):
    p = k.p
    allr = list(xa) + [r for s in wa for r in s]
    A = AddrSet(k, allr)
    h2off = 1024 if xfrag_natural else 2048
    depth = nslots - 1
    nissued = 0
    for t in range(min(depth, nst)):
        issue(t, t % nslots); nissued += 1
    for t in range(nst):
        slot = t % nslots
        after = nissued - t - 1
        p('s_waitcnt vmcnt(%d)' % (after * 4))
        p('s_barrier')
        if nissued < nst:
            issue(nissued, nissued % nslots); nissued += 1
        base = slot * 32768
        A.off(base, 32768)
        def reads(s):
            x, w0, w1 = fr[s]
            p('ds_read_b128 %s, v%d offset:%d' % (vr(x, 4), xa[s], A.imm(base)))
            for f, w in ((0, w0), (1, w1)):
                p('ds_read_b64_tr_b16 %s, v%d offset:%d' % (vr(w, 2), wa[s][f], A.imm(base)))
                p('ds_read_b64_tr_b16 %s, v%d offset:%d' % (vr(w + 2, 2), wa[s][f], A.imm(base + h2off)))
        for s in range(4): reads(s)
        for s in range(4):
            p('s_waitcnt lgkmcnt(%d)' % (5 * (3 - s)))
            x, w0, w1 = fr[s]
            for f, w in ((0, w0), (1, w1)):
                if normal_orient:
                    p('v_mfma_f32_32x32x16_bf16 %s, %s, %s, %s' % (vr(acc[f], 16), vr(x, 4), vr(w, 4), vr(acc[f], 16)))
                else:
                    p('v_mfma_f32_32x32x16_bf16 %s, %s, %s, %s' % (vr(acc[f], 16), vr(w, 4), vr(x, 4), vr(acc[f], 16)))
            if stat_x is not None and s in (0, 2):
                for j in range(4):
                    p('v_dot2_f32_bf16 v%d, v%d, v%d, v%d' % (stat_x[0], x + j, vones, stat_x[0]))
                    p('v_dot2_f32_bf16 v%d, v%d, v%d, v%d' % (stat_x[1], x + j, x + j, stat_x[1]))
            if s == 0:
                for j in range(4):
                    p('v_dot2_f32_bf16 v%d, v%d, v%d, v%d' % (cs[0], w0 + j, vones, cs[0]))
                    p('v_dot2_f32_bf16 v%d, v%d, v%d, v%d' % (cs[1], w1 + j, vones, cs[1]))

def w_addr_big(k, vl, sg, sp, natural):
    p = k.p
    t0 = k.v.alloc(); t1 = k.v.alloc(); t2 = k.v.alloc(); r = k.v.alloc(); rowb = k.v.alloc()
    wa = [[k.v.alloc() for f in range(2)] for s in range(4)]
    st = k.s.alloc()
    p('v_bfe_u32 v%d, v%d, 2, 2' % (r, vl))
    p('v_lshrrev_b32 v%d, 5, v%d' % (t0, vl))
    p('v_lshlrev_b32 v%d, %d, v%d' % (t0, 3 if natural else 2, t0))
    p('v_add_u32 v%d, v%d, v%d' % (t0, t0, r))
    p('v_lshlrev_b32 v%d, 8, v%d' % (rowb, t0))
    p('v_and_b32 v%d, 1, v%d' % (t0, vl))
    p('v_lshlrev_b32 v%d, 3, v%d' % (t0, t0))
    p('v_add_u32 v%d, v%d, v%d' % (rowb, rowb, t0))
    p('v_add_u32 v%d, 16384, v%d' % (rowb, rowb))
    p('v_bfe_u32 v%d, v%d, 4, 1' % (t0, vl))
    p('v_lshlrev_b32 v%d, 1, v%d' % (t0, t0))
    p('v_bfe_u32 v%d, v%d, 1, 1' % (t1, vl))
    p('v_add_u32 v%d, v%d, v%d' % (t0, t0, t1))
    p('s_lshl_b32 s%d, s%d, 3' % (st, sg))
    p('v_add_u32 v%d, s%d, v%d' % (t0, st, t0))
    p('v_lshlrev_b32 v%d, 2, v%d' % (t1, r))
    for f in range(2):
        p('v_add_u32 v%d, %d, v%d' % (t2, 4 * f, t0))
        p('v_xor_b32 v%d, v%d, v%d' % (t2, t2, t1))
        p('v_lshlrev_b32 v%d, 4, v%d' % (t2, t2))
        p('v_add_u32 v%d, v%d, v%d' % (t2, t2, rowb))
        for s in range(4):
            p('s_xor_b32 s%d, s%d, %d' % (st, sp, s))
            p('s_lshl_b32 s%d, s%d, 12' % (st, st))
            p('v_add_u32 v%d, s%d, v%d' % (wa[s][f], st, t2))
    return wa

def w_dma_voff_big(k, vl, sw, stride_s, base_s, P1_s, P2_s):
    p = k.p
    vo = k.v.alloc(); t0 = k.v.alloc(); t1 = k.v.alloc(); c = k.v.alloc()
    st = k.s.alloc()
    p('v_lshrrev_b32 v%d, 4, v%d' % (t0, vl))
    p('v_lshlrev_b32 v%d, 2, v%d' % (t1, t0))
    p('v_and_b32 v%d, 15, v%d' % (c, vl))
    p('v_xor_b32 v%d, v%d, v%d' % (c, c, t1))
    p('s_lshl_b32 s%d, s%d, 3' % (st, sw))
    p('v_add_u32 v%d, s%d, v%d' % (t0, st, t0))
    p('v_mul_lo_u32 v%d, v%d, s%d' % (vo, t0, stride_s))
    p('v_add_u32 v%d, s%d, v%d' % (vo, base_s, vo))
    p('v_and_b32 v%d, 3, v%d' % (t0, c))
    p('v_lshlrev_b32 v%d, 4, v%d' % (t0, t0))
    p('v_add_u32 v%d, v%d, v%d' % (vo, vo, t0))
    p('v_bfe_u32 v%d, v%d, 2, 1' % (t0, c))
    p('v_mul_lo_u32 v%d, v%d, s%d' % (t0, t0, P1_s))
    p('v_add_u32 v%d, v%d, v%d' % (vo, vo, t0))
    p('v_lshrrev_b32 v%d, 3, v%d' % (t0, c))
    p('v_mul_lo_u32 v%d, v%d, s%d' % (t0, t0, P2_s))
    p('v_add_u32 v%d, v%d, v%d' % (vo, vo, t0))
    return vo

def colsum_rowstat_exchange(k, vl, smg, sg, cs, LDS_CST):
    p = k.p
    t0 = k.v.alloc(); st = k.s.alloc()
    p('v_lshrrev_b32 v%d, 5, v%d' % (t0, vl))
    p('s_lshl_b32 s%d, s%d, 1' % (st, smg))
    p('v_add_u32 v%d, s%d, v%d' % (t0, st, t0))
    p('v_lshlrev_b32 v%d, 7, v%d' % (t0, t0))
    t1 = k.v.alloc()
    p('v_and_b32 v%d, 31, v%d' % (t1, vl))
    p('v_add_u32 v%d, v%d, v%d' % (t0, t0, t1))
    p('s_lshl_b32 s%d, s%d, 6' % (st, sg))
    p('v_add_u32 v%d, s%d, v%d' % (t0, st, t0))
    p('v_lshlrev_b32 v%d, 2, v%d' % (t0, t0))
    p('ds_write_b32 v%d, v%d offset:%d' % (t0, cs[0], LDS_CST))
    p('ds_write_b32 v%d, v%d offset:%d' % (t0, cs[1], LDS_CST + 128))


def consts_gelu(k):
    k.sGC3 = k.s.alloc(); k.vGC1 = k.v.alloc()
    k.p('s_mov_b32 s%d, %s' % (k.sGC3, fl(GC3)))
    k.p('v_mov_b32 v%d, %s' % (k.vGC1, fl(GC1)))

def kernel_A(nslots=4):
    k = Kern(KN + '_kernel', 256, nslots * 32768)
    p = k.p
    k.header()
    sp_x = k.s.alloc(2, 2); sp_q = k.s.alloc(2, 2); sp_w1 = k.s.alloc(2, 2); sp_ws = k.s.alloc(2, 2)
    p('s_load_dwordx2 %s, s[0:1], 0' % sr(sp_x, 2))
    p('s_load_dwordx2 %s, s[0:1], 8' % sr(sp_q, 2))
    p('s_load_dwordx2 %s, s[0:1], 32' % sr(sp_w1, 2))
    p('s_load_dwordx2 %s, s[0:1], 80' % sr(sp_ws, 2))
    vl, sw = lane_wave(k)
    srb = k.s.alloc(); sct = k.s.alloc(); smg = k.s.alloc(); sg = k.s.alloc(); spp = k.s.alloc()
    st = k.s.alloc(); st2 = k.s.alloc()
    p('s_and_b32 s%d, s2, 7' % srb)
    p('s_lshr_b32 s%d, s2, 3' % sct)
    p('s_lshr_b32 s%d, s%d, 4' % (st, sct))
    p('s_lshl_b32 s%d, s%d, 1' % (srb, srb))
    p('s_add_u32 s%d, s%d, s%d' % (srb, srb, st))
    p('s_and_b32 s%d, s%d, 15' % (sct, sct))
    p('s_lshr_b32 s%d, s%d, 1' % (smg, sw))
    p('s_and_b32 s%d, s%d, 1' % (sg, sw))
    p('s_xor_b32 s%d, s%d, s%d' % (spp, smg, sg))
    sty = k.s.alloc(); sstride = k.s.alloc(); sbase = k.s.alloc(); sP1 = k.s.alloc(); sP2 = k.s.alloc()
    ssize = k.s.alloc(); swp = k.s.alloc(2, 2)
    p('s_waitcnt lgkmcnt(0)')
    Lkv = k.L('kv'); Lw1 = k.L('w1'); Ld = k.L('tyd')
    p('s_cmp_ge_u32 s%d, 12' % sct)
    p('s_cbranch_scc1 %s' % Lw1)
    p('s_cmp_ge_u32 s%d, 4' % sct)
    p('s_cbranch_scc1 %s' % Lkv)
    p('s_mov_b32 s%d, 0' % sty); p('s_mov_b32 s%d, 3072' % sstride); p('s_lshl_b32 s%d, s%d, 8' % (sbase, sct))
    p('s_mov_b32 s%d, 64' % sP1); p('s_mov_b32 s%d, 128' % sP2); p('s_mov_b32 s%d, 0x180000' % ssize)
    p('s_mov_b64 %s, %s' % (sr(swp, 2), sr(sp_q, 2)))
    p('s_branch %s' % Ld)
    p.label(Lkv)
    p('s_mov_b32 s%d, 1' % sty); p('s_mov_b32 s%d, 3072' % sstride)
    p('s_sub_u32 s%d, s%d, 4' % (sbase, sct)); p('s_lshl_b32 s%d, s%d, 7' % (sbase, sbase)); p('s_add_u32 s%d, s%d, 1024' % (sbase, sbase))
    p('s_mov_b32 s%d, 1024' % sP1); p('s_mov_b32 s%d, 64' % sP2); p('s_mov_b32 s%d, 0x180000' % ssize)
    p('s_mov_b64 %s, %s' % (sr(swp, 2), sr(sp_q, 2)))
    p('s_branch %s' % Ld)
    p.label(Lw1)
    p('s_mov_b32 s%d, 2' % sty); p('s_mov_b32 s%d, 1024' % sstride)
    p('s_sub_u32 s%d, s%d, 12' % (sbase, sct)); p('s_lshl_b32 s%d, s%d, 8' % (sbase, sbase))
    p('s_mov_b32 s%d, 64' % sP1); p('s_mov_b32 s%d, 128' % sP2); p('s_mov_b32 s%d, 0x80000' % ssize)
    p('s_mov_b64 %s, %s' % (sr(swp, 2), sr(sp_w1, 2)))
    p.label(Ld)
    SX = k.srd(sp_x, 0x200000)
    SW = k.s.alloc(4, 4)
    p('s_mov_b32 s%d, s%d' % (SW, swp)); p('s_mov_b32 s%d, s%d' % (SW + 1, swp + 1))
    p('s_mov_b32 s%d, s%d' % (SW + 2, ssize)); p('s_mov_b32 s%d, 0x20000' % (SW + 3))
    SWS = k.srd(sp_ws, WS_SIZE)
    vx = [k.v.alloc(), k.v.alloc()]
    m = k.v.mark()
    t0 = k.v.alloc(); t1 = k.v.alloc(); t2 = k.v.alloc()
    for i in range(2):
        p('v_lshrrev_b32 v%d, 3, v%d' % (t0, vl))
        p('s_lshl_b32 s%d, s%d, 7' % (st, srb))
        p('s_lshl_b32 s%d, s%d, 4' % (st2, sw))
        p('s_add_u32 s%d, s%d, s%d' % (st, st, st2))
        p('s_add_u32 s%d, s%d, %d' % (st, st, 8 * i))
        p('v_add_u32 v%d, s%d, v%d' % (t0, st, t0))
        p('v_lshlrev_b32 v%d, 10, v%d' % (t0, t0))
        p('v_lshrrev_b32 v%d, 4, v%d' % (t1, vl))
        p('v_add_u32 v%d, %d, v%d' % (t1, 4 * i, t1))
        p('v_and_b32 v%d, 7, v%d' % (t2, vl))
        p('v_xor_b32 v%d, v%d, v%d' % (t1, t1, t2))
        p('v_lshlrev_b32 v%d, 4, v%d' % (t1, t1))
        p('v_add_u32 v%d, v%d, v%d' % (vx[i], t0, t1))
    k.v.release(m)
    vw = k.v.alloc()
    m = k.v.mark()
    vw_ = w_dma_voff_big(k, vl, sw, sstride, sbase, sP1, sP2)
    p('v_mov_b32 v%d, v%d' % (vw, vw_))
    k.v.release(m)
    sldsw = k.s.alloc(); sso = k.s.alloc(); sstr4 = k.s.alloc(); sstr64 = k.s.alloc()
    p('s_lshl_b32 s%d, s%d, 11' % (sldsw, sw))
    p('s_lshl_b32 s%d, s%d, 2' % (sstr4, sstride))
    p('s_lshl_b32 s%d, s%d, 6' % (sstr64, sstride))
    swso = k.s.alloc()
    p('s_mov_b32 s%d, 0' % swso)
    def issue(stage, slot):
        for i in range(2):
            p('s_add_u32 m0, s%d, %d' % (sldsw, slot * 32768 + i * 1024))
            p('s_movk_i32 s%d, %d' % (sso, stage * 128))
            p('buffer_load_dwordx4 v%d, %s, s%d offen lds' % (vx[i], sr(SX, 4), sso))
        p('s_add_u32 m0, s%d, %d' % (sldsw, slot * 32768 + 16384))
        p('s_nop 0')
        p('buffer_load_dwordx4 v%d, %s, s%d offen lds' % (vw, sr(SW, 4), swso))
        p('s_add_u32 m0, s%d, %d' % (sldsw, slot * 32768 + 16384 + 1024))
        p('s_add_u32 s%d, s%d, s%d' % (sso, swso, sstr4))
        p('buffer_load_dwordx4 v%d, %s, s%d offen lds' % (vw, sr(SW, 4), sso))
        p('s_add_u32 s%d, s%d, s%d' % (swso, swso, sstr64))
    xa = [k.v.alloc() for s in range(4)]
    m = k.v.mark()
    t0 = k.v.alloc(); t1 = k.v.alloc(); t2 = k.v.alloc()
    p('v_and_b32 v%d, 31, v%d' % (t0, vl))
    p('s_lshl_b32 s%d, s%d, 5' % (st, smg))
    p('v_add_u32 v%d, s%d, v%d' % (t0, st, t0))
    p('v_bfe_u32 v%d, v%d, 1, 3' % (t1, t0))
    p('v_lshrrev_b32 v%d, 5, v%d' % (t2, vl))
    p('v_xor_b32 v%d, v%d, v%d' % (t1, t1, t2))
    p('v_lshlrev_b32 v%d, 7, v%d' % (t0, t0))
    for s in range(4):
        p('s_xor_b32 s%d, s%d, %d' % (st, spp, s))
        p('s_lshl_b32 s%d, s%d, 1' % (st, st))
        p('v_xor_b32 v%d, s%d, v%d' % (t2, st, t1))
        p('v_lshlrev_b32 v%d, 4, v%d' % (t2, t2))
        p('v_add_u32 v%d, v%d, v%d' % (xa[s], t0, t2))
    k.v.release(m)
    wa = [[k.v.alloc() for f in range(2)] for s in range(4)]
    m = k.v.mark()
    wa_ = w_addr_big(k, vl, sg, spp, True)
    for s in range(4):
        for f in range(2): p('v_mov_b32 v%d, v%d' % (wa[s][f], wa_[s][f]))
    k.v.release(m)
    acc = [k.v.alloc(16, 4), k.v.alloc(16, 4)]
    for a in acc:
        for j in range(16): p('v_mov_b32 v%d, 0' % (a + j))
    sx = k.v.alloc(); sq = k.v.alloc(); cs = [k.v.alloc(), k.v.alloc()]; vones = k.v.alloc()
    for r in (sx, sq, cs[0], cs[1]): p('v_mov_b32 v%d, 0' % r)
    p('v_mov_b32 v%d, 0x3f803f80' % vones)
    consts_gelu(k)
    mfr = k.v.mark()
    fr = [(k.v.alloc(4, 4), k.v.alloc(4, 4), k.v.alloc(4, 4)) for s in range(4)]
    Lnorm = k.L('norm'); Lepi = k.L('epi')
    p('s_cmp_eq_u32 s%d, 1' % sty)
    p('s_cbranch_scc1 %s' % Lnorm)
    save = [list(xa), [list(x) for x in wa]]
    big_gemm(k, 8, nslots, issue, xa, wa, True, False, acc, (sx, sq), cs, vones, fr)
    rebase_total = None
    p('s_branch %s' % Lepi)
    p.label(Lnorm)
    big_gemm(k, 8, nslots, issue, xa, wa, True, True, acc, (sx, sq), cs, vones, fr)
    p.label(Lepi)
    k.v.release(mfr)
    L_XST = 0; L_CST = 4096; L_MR = 8192; L_CS = 9216 + 1024; L_KV = 16384
    p('s_barrier')
    m = k.v.mark()
    t0 = k.v.alloc(); t1 = k.v.alloc()
    pair = k.v.alloc(2, 2)
    p('v_lshrrev_b32 v%d, 5, v%d' % (t0, vl))
    p('s_lshl_b32 s%d, s%d, 1' % (st, sg))
    p('v_add_u32 v%d, s%d, v%d' % (t0, st, t0))
    p('v_lshlrev_b32 v%d, 7, v%d' % (t0, t0))
    p('v_and_b32 v%d, 31, v%d' % (t1, vl))
    p('v_add_u32 v%d, v%d, v%d' % (t0, t0, t1))
    p('s_lshl_b32 s%d, s%d, 5' % (st, smg))
    p('v_add_u32 v%d, s%d, v%d' % (t0, st, t0))
    p('v_lshlrev_b32 v%d, 3, v%d' % (t0, t0))
    p('v_mov_b32 v%d, v%d' % (pair, sx)); p('v_mov_b32 v%d, v%d' % (pair + 1, sq))
    p('ds_write_b64 v%d, %s offset:%d' % (t0, vr(pair, 2), L_XST))
    colsum_rowstat_exchange(k, vl, smg, sg, cs, L_CST)
    k.v.release(m)
    p('s_waitcnt lgkmcnt(0)')
    p('s_barrier')
    Lcol = k.L('col'); Lfin = k.L('fin')
    p('s_cmp_ge_u32 s%d, 4' % sw); p('s_cbranch_scc1 %s' % Lfin)
    p('s_cmp_ge_u32 s%d, 2' % sw); p('s_cbranch_scc1 %s' % Lcol)
    m = k.v.mark()
    a = k.v.alloc(); q = [k.v.alloc(2, 2) for i in range(4)]
    om = k.v.alloc(2, 2); ef = k.v.alloc(2, 2); t0 = k.v.alloc(); t1 = k.v.alloc(); t2 = k.v.alloc()
    p('v_lshlrev_b32 v%d, 3, v0' % a)
    for i in range(4): p('ds_read_b64 %s, v%d offset:%d' % (vr(q[i], 2), a, L_XST + i * 1024))
    p('s_waitcnt lgkmcnt(0)')
    for c in range(2):
        p('v_add_f32 v%d, v%d, v%d' % (q[0] + c, q[0] + c, q[1] + c))
        p('v_add_f32 v%d, v%d, v%d' % (q[2] + c, q[2] + c, q[3] + c))
        p('v_add_f32 v%d, v%d, v%d' % (q[0] + c, q[0] + c, q[2] + c))
    stats_finalize(k, q[0], q[0] + 1, 512, om, om + 1, t0, t1, t2, w1=(ef, ef + 1))
    Lns = k.L('ns')
    p('s_cmp_lg_u32 s%d, 0' % sct); p('s_cbranch_scc1 %s' % Lns)
    p('s_lshl_b32 s%d, s%d, 10' % (st, srb))
    p('s_add_u32 s%d, s%d, 0x%x' % (st, st, WS_ST0))
    p('buffer_store_dwordx2 %s, v%d, %s, s%d offen' % (vr(om, 2), a, sr(SWS, 4), st))
    p.label(Lns)
    Lq = k.L('useq')
    p('s_cmp_lg_u32 s%d, 2' % sty); p('s_cbranch_scc1 %s' % Lq)
    p('v_mov_b32 v%d, v%d' % (om, ef)); p('v_mov_b32 v%d, v%d' % (om + 1, ef + 1))
    p.label(Lq)
    p('ds_write_b64 v%d, %s offset:%d' % (a, vr(om, 2), L_MR))
    p('s_branch %s' % Lfin)
    k.v.release(m)
    p.label(Lcol)
    m = k.v.mark()
    a = k.v.alloc(); q = [k.v.alloc() for i in range(8)]
    p('v_subrev_u32 v%d, 128, v0' % a)
    p('v_lshlrev_b32 v%d, 2, v%d' % (a, a))
    for i in range(8): p('ds_read_b32 v%d, v%d offset:%d' % (q[i], a, L_CST + i * 512))
    p('s_waitcnt lgkmcnt(0)')
    for i in range(4): p('v_add_f32 v%d, v%d, v%d' % (q[i], q[i], q[i + 4]))
    p('v_add_f32 v%d, v%d, v%d' % (q[0], q[0], q[1])); p('v_add_f32 v%d, v%d, v%d' % (q[2], q[2], q[3]))
    p('v_add_f32 v%d, v%d, v%d' % (q[0], q[0], q[2]))
    p('ds_write_b32 v%d, v%d offset:%d' % (a, q[0], L_CS))
    k.v.release(m)
    p.label(Lfin)
    p('s_waitcnt lgkmcnt(0)')
    p('s_barrier')
    Lekv = k.L('ekv')
    p('s_cmp_eq_u32 s%d, 1' % sty); p('s_cbranch_scc1 %s' % Lekv)
    m = k.v.mark()
    a = k.v.alloc(); mr = k.v.alloc(2, 2); csv = [[k.v.alloc(4, 4) for i in range(4)] for f in range(2)]
    t0 = k.v.alloc()
    p('v_and_b32 v%d, 31, v%d' % (t0, vl))
    p('s_lshl_b32 s%d, s%d, 5' % (st, smg))
    p('v_add_u32 v%d, s%d, v%d' % (t0, st, t0))
    p('v_lshlrev_b32 v%d, 3, v%d' % (a, t0))
    p('ds_read_b64 %s, v%d offset:%d' % (vr(mr, 2), a, L_MR))
    p('v_lshrrev_b32 v%d, 5, v%d' % (t0, vl))
    p('v_lshlrev_b32 v%d, 4, v%d' % (t0, t0))
    p('s_lshl_b32 s%d, s%d, 8' % (st, sg))
    p('v_add_u32 v%d, s%d, v%d' % (a, st, t0))
    for f in range(2):
        for i in range(4):
            p('ds_read_b128 %s, v%d offset:%d' % (vr(csv[f][i], 4), a, L_CS + f * 128 + i * 32))
    p('s_waitcnt lgkmcnt(0)')
    for f in range(2):
        for i in range(4):
            for r in range(4):
                R = acc[f] + 4 * i + r
                p('v_fma_f32 v%d, -v%d, v%d, v%d' % (R, mr, csv[f][i] + r, R))
    tmp = [k.v.alloc() for i in range(16)]
    tmq = [k.v.alloc() for i in range(16)]
    pk = [k.v.alloc(4, 4) for i in range(2)]
    vst = k.v.alloc()
    p('v_lshlrev_b32 v%d, 4, v%d' % (vst, vl))
    sdst = k.s.alloc()
    Lw1e = k.L('w1e'); Lst = k.L('st'); Ldone = k.L('done')
    p('s_lshl_b32 s%d, s%d, 2' % (sdst, srb)); p('s_add_u32 s%d, s%d, s%d' % (sdst, sdst, smg))
    p('s_lshl_b32 s%d, s%d, 5' % (sdst, sdst))
    p('s_and_b32 s%d, s%d, 3' % (st, sct))
    p('s_lshl_b32 s%d, s%d, 3' % (st, st)); p('s_add_u32 s%d, s%d, s%d' % (sdst, sdst, st))
    p('s_lshl_b32 s%d, s%d, 2' % (st, sg)); p('s_add_u32 s%d, s%d, s%d' % (sdst, sdst, st))
    p('s_lshl_b32 s%d, s%d, 10' % (sdst, sdst))
    p('s_cmp_eq_u32 s%d, 2' % sty); p('s_cbranch_scc1 %s' % Lw1e)
    sl = k.v.alloc()
    p('v_mul_f32 v%d, %s, v%d' % (sl, fl(LOG2E), mr + 1))
    p('s_add_u32 s%d, s%d, 0x%x' % (sdst, sdst, WS_PQ))
    for f in range(2):
        for j in range(16): p('v_mul_f32 v%d, v%d, v%d' % (tmp[j], acc[f] + j, sl))
        for j in range(16): p('v_exp_f32 v%d, v%d' % (tmp[j], tmp[j]))
        for j in range(16): p('v_fma_f32 v%d, v%d, v%d, 1.0' % (tmq[j], acc[f] + j, mr + 1))
        for j in range(16):
            p('v_cmp_lt_f32 vcc, 0, v%d' % (acc[f] + j))
            p('v_cndmask_b32 v%d, v%d, v%d, vcc' % (tmp[j], tmp[j], tmq[j]))
        for j in range(16): p('v_add_f32 v%d, %s, v%d' % (acc[f] + j, fl(1e-6), tmp[j]))
    p('s_branch %s' % Lst)
    p.label(Lw1e)
    p('s_add_u32 s%d, s%d, 0x%x' % (sdst, sdst, WS_H))
    for f in range(2):
        for j in range(16): p('v_mul_f32 v%d, v%d, v%d' % (acc[f] + j, acc[f] + j, mr + 1))
        gelu_multi(k, [acc[f] + j for j in range(16)], tmp)
    p.label(Lst)
    for f in range(2):
        for h in range(2):
            P = pk[h]
            for j in range(4):
                p('v_cvt_pk_bf16_f32 v%d, v%d, v%d' % (P + j, acc[f] + 8 * h + 2 * j, acc[f] + 8 * h + 2 * j + 1))
            p('s_add_u32 s%d, s%d, %d' % (st, sdst, (2 * f + h) * 1024))
            p('buffer_store_dwordx4 %s, v%d, %s, s%d offen' % (vr(P, 4), vst, sr(SWS, 4), st))
    p('s_branch %s' % Ldone)
    k.v.release(m)
    p.label(Lekv)
    m = k.v.mark()
    a = k.v.alloc(); t0 = k.v.alloc()
    csl = [k.v.alloc(), k.v.alloc()]
    mrv = [k.v.alloc(8, 4) for i in range(4)]
    p('v_and_b32 v%d, 31, v%d' % (t0, vl))
    p('s_lshl_b32 s%d, s%d, 6' % (st, sg))
    p('v_add_u32 v%d, s%d, v%d' % (t0, st, t0))
    p('v_lshlrev_b32 v%d, 2, v%d' % (a, t0))
    p('ds_read_b32 v%d, v%d offset:%d' % (csl[0], a, L_CS))
    p('ds_read_b32 v%d, v%d offset:%d' % (csl[1], a, L_CS + 128))
    p('v_lshrrev_b32 v%d, 5, v%d' % (t0, vl))
    p('v_lshlrev_b32 v%d, 5, v%d' % (t0, t0))
    p('s_lshl_b32 s%d, s%d, 8' % (st, smg))
    p('v_add_u32 v%d, s%d, v%d' % (a, st, t0))
    for i in range(4):
        p('ds_read_b128 %s, v%d offset:%d' % (vr(mrv[i], 4), a, L_MR + i * 64))
        p('ds_read_b128 %s, v%d offset:%d' % (vr(mrv[i] + 4, 4), a, L_MR + i * 64 + 16))
    p('s_waitcnt lgkmcnt(0)')
    tmp = [k.v.alloc() for i in range(16)]
    tmq = [k.v.alloc() for i in range(16)]
    for f in range(2):
        for i in range(4):
            for r in range(4):
                R = acc[f] + 4 * i + r
                p('v_fma_f32 v%d, -v%d, v%d, v%d' % (R, mrv[i] + 2 * r, csl[f], R))
                p('v_mul_f32 v%d, v%d, v%d' % (R, R, mrv[i] + 2 * r + 1))
    for j in range(16): p('v_mul_f32 v%d, %s, v%d' % (tmp[j], fl(LOG2E), acc[0] + j))
    for j in range(16): p('v_exp_f32 v%d, v%d' % (tmp[j], tmp[j]))
    for j in range(16): p('v_add_f32 v%d, 1.0, v%d' % (tmq[j], acc[0] + j))
    for j in range(16):
        p('v_cmp_lt_f32 vcc, 0, v%d' % (acc[0] + j))
        p('v_cndmask_b32 v%d, v%d, v%d, vcc' % (tmp[j], tmp[j], tmq[j]))
    for j in range(16): p('v_add_f32 v%d, %s, v%d' % (acc[0] + j, fl(1e-6), tmp[j]))
    pkk = k.v.alloc(8, 4); pkv = k.v.alloc(8, 4)
    for j in range(8):
        p('v_cvt_pk_bf16_f32 v%d, v%d, v%d' % (pkk + j, acc[0] + 2 * j, acc[0] + 2 * j + 1))
        p('v_cvt_pk_bf16_f32 v%d, v%d, v%d' % (pkv + j, acc[1] + 2 * j, acc[1] + 2 * j + 1))
    D = k.v.alloc(16, 4)
    for j in range(16): p('v_mov_b32 v%d, 0' % (D + j))
    z = k.v.alloc()
    p('v_mov_b32 v%d, 0' % z)
    for h in range(2):
        p('v_mfma_f32_32x32x16_bf16 %s, %s, %s, %s' % (vr(D, 16), vr(pkk + 4 * h, 4), vr(pkv + 4 * h, 4), vr(D, 16)))
    for j in range(8): p('v_dot2_f32_bf16 v%d, v%d, v%d, v%d' % (z, pkk + j, vones, z))
    p('v_and_b32 v%d, 16, v%d' % (t0, vl))
    p('v_cmp_eq_u32 vcc, 0, v%d' % t0)
    for j in range(8): p('v_cndmask_b32 v%d, v%d, v%d, vcc' % (D + j, D + 8 + j, D + j))
    p('v_lshlrev_b32 v%d, 4, v%d' % (a, vl))
    p('s_lshl_b32 s%d, s%d, 11' % (st, sw))
    p('v_add_u32 v%d, s%d, v%d' % (a, st, a))
    p('ds_write_b128 v%d, %s offset:%d' % (a, vr(D, 4), L_KV))
    p('ds_write_b128 v%d, %s offset:%d' % (a, vr(D + 4, 4), L_KV + 1024))
    p('v_lshlrev_b32 v%d, 2, v%d' % (a, vl))
    p('s_lshl_b32 s%d, s%d, 8' % (st, sw))
    p('v_add_u32 v%d, s%d, v%d' % (a, st, a))
    p('ds_write_b32 v%d, v%d offset:%d' % (a, z, L_KV + 16384))
    p('s_waitcnt lgkmcnt(0)')
    p('s_barrier')
    Lz = k.L('z')
    p('s_cmp_ge_u32 s%d, 4' % sw); p('s_cbranch_scc1 %s' % Lz)
    q = [k.v.alloc(4, 4) for i in range(4)]
    p('v_lshlrev_b32 v%d, 4, v0' % a)
    for i in range(4): p('ds_read_b128 %s, v%d offset:%d' % (vr(q[i], 4), a, L_KV + i * 4096))
    p('s_waitcnt lgkmcnt(0)')
    for c in range(4):
        p('v_add_f32 v%d, v%d, v%d' % (q[0] + c, q[0] + c, q[1] + c))
        p('v_add_f32 v%d, v%d, v%d' % (q[2] + c, q[2] + c, q[3] + c))
        p('v_add_f32 v%d, v%d, v%d' % (q[0] + c, q[0] + c, q[2] + c))
    p('s_sub_u32 s%d, s%d, 4' % (st, sct)); p('s_lshl_b32 s%d, s%d, 2' % (st, st))
    p('s_lshr_b32 s%d, s%d, 1' % (st2, sw)); p('s_lshl_b32 s%d, s%d, 1' % (st2, st2)); p('s_add_u32 s%d, s%d, s%d' % (st, st, st2))
    p('s_lshl_b32 s%d, s%d, 5' % (st2, srb)); p('s_add_u32 s%d, s%d, s%d' % (st, st, st2))
    p('s_mul_i32 s%d, s%d, 1088' % (st, st))
    p('s_and_b32 s%d, s%d, 1' % (st2, sw)); p('s_lshl_b32 s%d, s%d, 4' % (st2, st2)); p('s_add_u32 s%d, s%d, s%d' % (st, st, st2))
    p('s_add_u32 s%d, s%d, 0x%x' % (st, st, WS_KVP))
    p('v_bfe_u32 v%d, v%d, 4, 1' % (t0, vl))
    p('v_mul_u32_u24 v%d, 1088, v%d' % (a, t0))
    p('v_and_b32 v%d, 15, v%d' % (t0, vl)); p('v_lshlrev_b32 v%d, 5, v%d' % (t0, t0)); p('v_add_u32 v%d, v%d, v%d' % (a, a, t0))
    p('v_lshrrev_b32 v%d, 5, v%d' % (t0, vl)); p('v_lshlrev_b32 v%d, 9, v%d' % (t0, t0)); p('v_add_u32 v%d, v%d, v%d' % (a, a, t0))
    p('buffer_store_dwordx4 %s, v%d, %s, s%d offen' % (vr(q[0], 4), a, sr(SWS, 4), st))
    p('s_branch %s' % Ldone)
    p.label(Lz)
    p('s_cmp_lg_u32 s%d, 4' % sw); p('s_cbranch_scc1 %s' % Ldone)
    q = [k.v.alloc() for i in range(8)]
    p('v_lshrrev_b32 v%d, 5, v%d' % (t0, vl)); p('v_lshlrev_b32 v%d, 8, v%d' % (a, t0))
    p('v_and_b32 v%d, 31, v%d' % (t0, vl)); p('v_lshlrev_b32 v%d, 2, v%d' % (t0, t0)); p('v_add_u32 v%d, v%d, v%d' % (a, a, t0))
    for mg in range(4):
        for hi in range(2):
            p('ds_read_b32 v%d, v%d offset:%d' % (q[mg * 2 + hi], a, L_KV + 16384 + mg * 512 + hi * 128))
    p('s_waitcnt lgkmcnt(0)')
    for i in range(4): p('v_add_f32 v%d, v%d, v%d' % (q[i], q[i], q[i + 4]))
    p('v_add_f32 v%d, v%d, v%d' % (q[0], q[0], q[1])); p('v_add_f32 v%d, v%d, v%d' % (q[2], q[2], q[3]))
    p('v_add_f32 v%d, v%d, v%d' % (q[0], q[0], q[2]))
    p('s_sub_u32 s%d, s%d, 4' % (st, sct)); p('s_lshl_b32 s%d, s%d, 2' % (st, st))
    p('s_lshl_b32 s%d, s%d, 5' % (st2, srb)); p('s_add_u32 s%d, s%d, s%d' % (st, st, st2))
    p('s_mul_i32 s%d, s%d, 1088' % (st, st))
    p('s_add_u32 s%d, s%d, 0x%x' % (st, st, WS_KVP + 1024))
    p('v_lshrrev_b32 v%d, 4, v%d' % (t0, vl)); p('v_mul_u32_u24 v%d, 1088, v%d' % (a, t0))
    p('v_and_b32 v%d, 15, v%d' % (t0, vl)); p('v_lshlrev_b32 v%d, 2, v%d' % (t0, t0)); p('v_add_u32 v%d, v%d, v%d' % (a, a, t0))
    p('buffer_store_dword v%d, v%d, %s, s%d offen' % (q[0], a, sr(SWS, 4), st))
    k.v.release(m)
    p.label(Ldone)
    k.footer()
    return k

def small_setup(k, vl, sw):
    p = k.p
    skg = k.s.alloc(); smi = k.s.alloc(); sni = k.s.alloc(); st = k.s.alloc()
    p('s_lshr_b32 s%d, s%d, 2' % (skg, sw))
    p('s_bfe_u32 s%d, s%d, 0x10001' % (smi, sw))
    p('s_and_b32 s%d, s%d, 1' % (sni, sw))
    xa = k.v.alloc(); wa = k.v.alloc()
    m = k.v.mark()
    t0 = k.v.alloc(); t1 = k.v.alloc(); r = k.v.alloc()
    p('s_lshl_b32 s%d, s%d, 1' % (st, smi)); p('s_add_u32 s%d, s%d, s%d' % (st, st, skg)); p('s_lshl_b32 s%d, s%d, 12' % (st, st))
    p('v_lshlrev_b32 v%d, 4, v%d' % (t0, vl))
    p('v_add_u32 v%d, s%d, v%d' % (xa, st, t0))
    p('v_bfe_u32 v%d, v%d, 2, 2' % (r, vl))
    p('v_lshrrev_b32 v%d, 5, v%d' % (t0, vl)); p('v_lshlrev_b32 v%d, 2, v%d' % (t0, t0)); p('v_add_u32 v%d, v%d, v%d' % (t0, t0, r))
    p('v_lshlrev_b32 v%d, 7, v%d' % (wa, t0))
    p('v_and_b32 v%d, 1, v%d' % (t0, vl)); p('v_lshlrev_b32 v%d, 3, v%d' % (t0, t0)); p('v_add_u32 v%d, v%d, v%d' % (wa, wa, t0))
    p('v_bfe_u32 v%d, v%d, 4, 1' % (t0, vl)); p('v_lshlrev_b32 v%d, 1, v%d' % (t0, t0))
    p('v_bfe_u32 v%d, v%d, 1, 1' % (t1, vl)); p('v_add_u32 v%d, v%d, v%d' % (t0, t0, t1))
    p('s_lshl_b32 s%d, s%d, 2' % (st, sni)); p('v_add_u32 v%d, s%d, v%d' % (t0, st, t0))
    p('v_lshrrev_b32 v%d, 1, v%d' % (t1, r)); p('v_lshlrev_b32 v%d, 2, v%d' % (t1, t1))
    p('v_xor_b32 v%d, v%d, v%d' % (t0, t0, t1)); p('v_lshlrev_b32 v%d, 4, v%d' % (t0, t0))
    p('v_add_u32 v%d, v%d, v%d' % (wa, wa, t0))
    p('s_lshl_b32 s%d, s%d, 13' % (st, skg)); p('s_add_u32 s%d, s%d, 16384' % (st, st))
    p('v_add_u32 v%d, s%d, v%d' % (wa, st, wa))
    k.v.release(m)
    return skg, smi, sni, xa, wa

def small_wdma_voff(k, vl, sct):
    p = k.p
    vo = k.v.alloc(); st = k.s.alloc()
    m = k.v.mark()
    t0 = k.v.alloc(); t1 = k.v.alloc()
    p('v_lshrrev_b32 v%d, 3, v%d' % (t0, vl)); p('v_lshlrev_b32 v%d, 10, v%d' % (vo, t0))
    p('v_bfe_u32 v%d, v%d, 4, 1' % (t0, vl)); p('v_lshlrev_b32 v%d, 2, v%d' % (t0, t0))
    p('v_and_b32 v%d, 7, v%d' % (t1, vl)); p('v_xor_b32 v%d, v%d, v%d' % (t0, t0, t1)); p('v_lshlrev_b32 v%d, 4, v%d' % (t0, t0))
    p('v_add_u32 v%d, v%d, v%d' % (vo, vo, t0))
    p('s_lshl_b32 s%d, s%d, 7' % (st, sct)); p('v_add_u32 v%d, s%d, v%d' % (vo, st, vo))
    k.v.release(m)
    return vo

def small_compute(k, A, base, xa, wa, acc, fr):
    p = k.p
    A.off(base, 32768)
    for s in range(4):
        x, w = fr[s]
        p('ds_read_b128 %s, v%d offset:%d' % (vr(x, 4), xa, A.imm(base + s * 1024)))
        p('ds_read_b64_tr_b16 %s, v%d offset:%d' % (vr(w, 2), wa, A.imm(base + s * 2048)))
        p('ds_read_b64_tr_b16 %s, v%d offset:%d' % (vr(w + 2, 2), wa, A.imm(base + s * 2048 + 1024)))
    for s in range(4):
        x, w = fr[s]
        p('s_waitcnt lgkmcnt(%d)' % (3 * (3 - s)))
        p('v_mfma_f32_32x32x16_bf16 %s, %s, %s, %s' % (vr(acc, 16), vr(w, 4), vr(x, 4), vr(acc, 16)))

def kgroup_exchange(k, vl, sw, skg, accs, lds_off, outs):
    p = k.p
    m = k.v.mark()
    a = k.v.alloc(); b = k.v.alloc(); st = k.s.alloc()
    p('v_lshlrev_b32 v%d, 4, v%d' % (a, vl))
    p('s_lshl_b32 s%d, s%d, 11' % (st, sw)); p('v_add_u32 v%d, s%d, v%d' % (b, st, a))
    p('s_xor_b32 s%d, s%d, 4' % (st, sw)); p('s_lshl_b32 s%d, s%d, 11' % (st, st)); p('v_add_u32 v%d, s%d, v%d' % (a, st, a))
    L1 = k.L('kg1'); L2 = k.L('kgd')
    p('s_cmp_eq_u32 s%d, 1' % skg); p('s_cbranch_scc1 %s' % L1)
    for i, acc in enumerate(accs):
        p('ds_write_b128 v%d, %s offset:%d' % (b, vr(acc + 8, 4), lds_off + i * 16384))
        p('ds_write_b128 v%d, %s offset:%d' % (b, vr(acc + 12, 4), lds_off + i * 16384 + 1024))
        for j in range(8): p('v_mov_b32 v%d, v%d' % (outs[i] + j, acc + j))
    p('s_branch %s' % L2)
    p.label(L1)
    for i, acc in enumerate(accs):
        p('ds_write_b128 v%d, %s offset:%d' % (b, vr(acc, 4), lds_off + i * 16384))
        p('ds_write_b128 v%d, %s offset:%d' % (b, vr(acc + 4, 4), lds_off + i * 16384 + 1024))
        for j in range(8): p('v_mov_b32 v%d, v%d' % (outs[i] + j, acc + 8 + j))
    p.label(L2)
    p('s_waitcnt lgkmcnt(0)')
    p('s_barrier')
    tq = [k.v.alloc(8, 4) for i in accs]
    for i, acc in enumerate(accs):
        p('ds_read_b128 %s, v%d offset:%d' % (vr(tq[i], 4), a, lds_off + i * 16384))
        p('ds_read_b128 %s, v%d offset:%d' % (vr(tq[i] + 4, 4), a, lds_off + i * 16384 + 1024))
    p('s_waitcnt lgkmcnt(0)')
    for i, acc in enumerate(accs):
        for j in range(8): p('v_add_f32 v%d, v%d, v%d' % (outs[i] + j, outs[i] + j, tq[i] + j))
    k.v.release(m)

def rb64_ct(k):
    p = k.p
    srb = k.s.alloc(); sct = k.s.alloc(); st = k.s.alloc()
    p('s_and_b32 s%d, s2, 7' % srb)
    p('s_lshr_b32 s%d, s2, 3' % sct)
    p('s_lshr_b32 s%d, s%d, 3' % (st, sct))
    p('s_lshl_b32 s%d, s%d, 2' % (srb, srb))
    p('s_add_u32 s%d, s%d, s%d' % (srb, srb, st))
    p('s_and_b32 s%d, s%d, 7' % (sct, sct))
    return srb, sct

def kernel_B():
    k = Kern('kB_kernel', 256, 131072)
    p = k.p
    k.header()
    sp_x = k.s.alloc(2, 2); sp_w2 = k.s.alloc(2, 2); sp_ws = k.s.alloc(2, 2)
    p('s_load_dwordx2 %s, s[0:1], 0' % sr(sp_x, 2))
    p('s_load_dwordx2 %s, s[0:1], 40' % sr(sp_w2, 2))
    p('s_load_dwordx2 %s, s[0:1], 80' % sr(sp_ws, 2))
    vl, sw = lane_wave(k)
    srb, sct = rb64_ct(k)
    skg, smi, sni, xa, wa = small_setup(k, vl, sw)
    vwd = small_wdma_voff(k, vl, sct)
    st = k.s.alloc(); st2 = k.s.alloc()
    vh = [k.v.alloc() for t in range(4)]
    m = k.v.mark()
    t0 = k.v.alloc(); t1 = k.v.alloc(); row = k.v.alloc(); big = k.v.alloc()
    p('v_mov_b32 v%d, 0x80000000' % big)
    p('s_lshl_b32 s%d, s%d, 6' % (st, srb)); p('s_lshl_b32 s%d, s%d, 5' % (st2, skg)); p('s_add_u32 s%d, s%d, s%d' % (st, st, st2))
    for t, sh in enumerate((-1, 1, -2, 2)):
        p('v_and_b32 v%d, 31, v%d' % (row, vl))
        p('v_add_u32 v%d, s%d, v%d' % (row, st, row))
        p('v_add_u32 v%d, %d, v%d' % (row, sh, row))
        p('v_lshrrev_b32 v%d, 5, v%d' % (t0, row)); p('v_lshlrev_b32 v%d, 15, v%d' % (t0, t0))
        p('v_and_b32 v%d, 31, v%d' % (t1, row)); p('v_lshlrev_b32 v%d, 4, v%d' % (t1, t1)); p('v_add_u32 v%d, v%d, v%d' % (t0, t0, t1))
        p('v_lshrrev_b32 v%d, 5, v%d' % (t1, vl)); p('v_lshlrev_b32 v%d, 9, v%d' % (t1, t1)); p('v_add_u32 v%d, v%d, v%d' % (t0, t0, t1))
        p('v_cmp_gt_u32 vcc, 2048, v%d' % row)
        p('v_cndmask_b32 v%d, v%d, v%d, vcc' % (vh[t], big, t0))
    k.v.release(m)
    p('s_waitcnt lgkmcnt(0)')
    SX = k.srd(sp_x, 0x200000)
    SW = k.srd(sp_w2, 0x80000)
    SWS = k.srd(sp_ws, WS_SIZE)
    SH = k.s.alloc(4, 4)
    p('s_add_u32 s%d, s%d, 0x%x' % (SH, sp_ws, WS_H)); p('s_addc_u32 s%d, s%d, 0' % (SH + 1, sp_ws + 1))
    p('s_mov_b32 s%d, 0x200000' % (SH + 2)); p('s_mov_b32 s%d, 0x20000' % (SH + 3))
    kvp = [k.v.alloc() for i in range(16)]
    Lnokv = k.L('nokv')
    vkt = k.v.alloc()
    p('s_cmp_ge_u32 s2, 32'); p('s_cbranch_scc1 %s' % Lnokv)
    p('s_cmp_ge_u32 s%d, 5' % sw); p('s_cbranch_scc1 %s' % Lnokv)
    p('v_lshlrev_b32 v%d, 2, v0' % vkt)
    p('v_mov_b32 v%d, 0x80000000' % kvp[0])
    p('v_cmp_gt_u32 vcc, 272, v0')
    p('v_cndmask_b32 v%d, v%d, v%d, vcc' % (vkt, kvp[0], vkt))
    p('s_mul_i32 s%d, s2, 1088' % st)
    p('s_add_u32 s%d, s%d, 0x%x' % (st, st, WS_KVP))
    for i in range(16):
        p('buffer_load_dword v%d, v%d, %s, s%d offen' % (kvp[i], vkt, sr(SWS, 4), st))
        if i < 15: p('s_add_u32 s%d, s%d, %d' % (st, st, 32 * 1088))
    p.label(Lnokv)
    xp = k.v.alloc(4, 4); mr = k.v.alloc(2, 2); vrow = k.v.alloc()
    m = k.v.mark()
    t0 = k.v.alloc(); t1 = k.v.alloc()
    p('s_lshl_b32 s%d, s%d, 6' % (st, srb)); p('s_lshl_b32 s%d, s%d, 5' % (st2, smi)); p('s_add_u32 s%d, s%d, s%d' % (st, st, st2))
    p('v_and_b32 v%d, 31, v%d' % (vrow, vl)); p('v_add_u32 v%d, s%d, v%d' % (vrow, st, vrow))
    p('v_lshlrev_b32 v%d, 10, v%d' % (t0, vrow))
    p('v_lshrrev_b32 v%d, 5, v%d' % (t1, vl)); p('v_lshlrev_b32 v%d, 3, v%d' % (t1, t1)); p('v_add_u32 v%d, v%d, v%d' % (t0, t0, t1))
    p('s_lshl_b32 s%d, s%d, 7' % (st, sct)); p('s_lshl_b32 s%d, s%d, 6' % (st2, sni)); p('s_add_u32 s%d, s%d, s%d' % (st, st, st2))
    p('s_lshl_b32 s%d, s%d, 5' % (st2, skg)); p('s_add_u32 s%d, s%d, s%d' % (st, st, st2))
    p('buffer_load_dwordx2 %s, v%d, %s, s%d offen' % (vr(xp, 2), t0, sr(SX, 4), st))
    p('buffer_load_dwordx2 %s, v%d, %s, s%d offen offset:16' % (vr(xp + 2, 2), t0, sr(SX, 4), st))
    p('v_lshlrev_b32 v%d, 3, v%d' % (t1, vrow))
    p('s_mov_b32 s%d, 0x%x' % (st2, WS_ST0))
    p('buffer_load_dwordx2 %s, v%d, %s, s%d offen' % (vr(mr, 2), t1, sr(SWS, 4), st2))
    k.v.release(m)
    sq = k.s.alloc(); sso = k.s.alloc(); sl = k.s.alloc()
    p('s_lshl_b32 s%d, s%d, 11' % (sl, sw))
    sxk = k.s.alloc(); swk = k.s.alloc()
    p('s_lshl_b32 s%d, s%d, 1' % (sq, sw)); p('s_and_b32 s%d, s%d, 7' % (sxk, sq)); p('s_lshl_b32 s%d, s%d, 10' % (sxk, sxk))
    p('s_lshl_b32 s%d, s%d, 14' % (swk, sw))
    for t in range(4):
        for i in range(2):
            p('s_add_u32 m0, s%d, %d' % (sl, t * 32768 + i * 1024))
            p('s_add_u32 s%d, s%d, %d' % (sso, sxk, t * 8192 + i * 1024))
            p('buffer_load_dwordx4 v%d, %s, s%d offen lds' % (vh[t], sr(SH, 4), sso))
        for i in range(2):
            p('s_add_u32 m0, s%d, %d' % (sl, t * 32768 + 16384 + i * 1024))
            p('s_add_u32 s%d, s%d, %d' % (sso, swk, t * 131072 + i * 8192))
            p('buffer_load_dwordx4 v%d, %s, s%d offen lds' % (vwd, sr(SW, 4), sso))
    acc = k.v.alloc(16, 4)
    for j in range(16): p('v_mov_b32 v%d, 0' % (acc + j))
    mfr = k.v.mark()
    fr = [(k.v.alloc(4, 4), k.v.alloc(4, 4)) for s in range(4)]
    A = AddrSet(k, [xa, wa])
    for t in range(4):
        p('s_waitcnt vmcnt(%d)' % ((3 - t) * 4))
        p('s_barrier')
        small_compute(k, A, t * 32768, xa, wa, acc, fr)
    k.v.release(mfr)
    hs = k.v.alloc(8, 4)
    EX = 131072
    p('s_barrier')
    kgroup_exchange(k, vl, sw, skg, [acc], 0, [hs])
    xf = k.v.alloc(8, 4); t0 = k.v.alloc(); t1 = k.v.alloc(); pk = k.v.alloc(4, 4)
    for j in range(4):
        p('v_lshlrev_b32 v%d, 16, v%d' % (xf + 2 * j, xp + j))
        p('v_and_b32 v%d, 0xffff0000, v%d' % (xf + 2 * j + 1, xp + j))
    for j in range(8):
        p('v_sub_f32 v%d, v%d, v%d' % (xf + j, xf + j, mr))
    def rnd8(r):
        for j in range(4):
            p('v_cvt_pk_bf16_f32 v%d, v%d, v%d' % (pk + j, r + 2 * j, r + 2 * j + 1))
        for j in range(4):
            p('v_lshlrev_b32 v%d, 16, v%d' % (r + 2 * j, pk + j))
            p('v_and_b32 v%d, 0xffff0000, v%d' % (r + 2 * j + 1, pk + j))
    rnd8(xf)
    for j in range(8): p('v_mul_f32 v%d, v%d, v%d' % (xf + j, xf + j, mr + 1))
    rnd8(xf); rnd8(hs)
    for j in range(8): p('v_add_f32 v%d, v%d, v%d' % (xf + j, xf + j, hs + j))
    rnd8(xf)
    p('s_lshl_b32 s%d, s%d, 1' % (st, srb)); p('s_add_u32 s%d, s%d, s%d' % (st, st, smi)); p('s_lshl_b32 s%d, s%d, 5' % (st, st))
    p('s_lshl_b32 s%d, s%d, 2' % (st2, sct)); p('s_add_u32 s%d, s%d, s%d' % (st, st, st2))
    p('s_lshl_b32 s%d, s%d, 1' % (st2, sni)); p('s_add_u32 s%d, s%d, s%d' % (st, st, st2))
    p('s_add_u32 s%d, s%d, s%d' % (st, st, skg))
    p('s_lshl_b32 s%d, s%d, 10' % (st, st)); p('s_add_u32 s%d, s%d, 0x%x' % (st, st, WS_X1))
    p('v_lshlrev_b32 v%d, 4, v%d' % (t0, vl))
    p('buffer_store_dwordx4 %s, v%d, %s, s%d offen' % (vr(pk, 4), t0, sr(SWS, 4), st))
    sp = k.v.alloc(2, 2); sp2 = k.v.alloc(2, 2)
    p('v_mov_b32 v%d, 0' % sp); p('v_mov_b32 v%d, 0' % (sp + 1))
    for j in range(8):
        p('v_add_f32 v%d, v%d, v%d' % (sp, sp, xf + j))
        p('v_fma_f32 v%d, v%d, v%d, v%d' % (sp + 1, xf + j, xf + j, sp + 1))
    LST = 32768
    p('v_and_b32 v%d, 31, v%d' % (t0, vl)); p('s_lshl_b32 s%d, s%d, 5' % (st, smi)); p('v_add_u32 v%d, s%d, v%d' % (t0, st, t0))
    p('v_lshlrev_b32 v%d, 6, v%d' % (t0, t0))
    p('s_lshl_b32 s%d, s%d, 1' % (st, sni)); p('s_add_u32 s%d, s%d, s%d' % (st, st, skg)); p('s_lshl_b32 s%d, s%d, 4' % (st, st))
    p('v_add_u32 v%d, s%d, v%d' % (t0, st, t0))
    p('v_lshrrev_b32 v%d, 5, v%d' % (t1, vl)); p('v_lshlrev_b32 v%d, 3, v%d' % (t1, t1)); p('v_add_u32 v%d, v%d, v%d' % (t0, t0, t1))
    p('ds_write_b64 v%d, %s offset:%d' % (t0, vr(sp, 2), LST))
    LKV = 40960
    p('s_waitcnt lgkmcnt(0)')
    p('s_barrier')
    Lnst = k.L('nst')
    p('s_cmp_lg_u32 s%d, 0' % sw); p('s_cbranch_scc1 %s' % Lnst)
    q = [k.v.alloc(4, 4) for i in range(4)]
    p('v_lshlrev_b32 v%d, 6, v%d' % (t0, vl))
    for i in range(4): p('ds_read_b128 %s, v%d offset:%d' % (vr(q[i], 4), t0, LST + i * 16))
    p('s_waitcnt lgkmcnt(0)')
    for c in range(4):
        p('v_add_f32 v%d, v%d, v%d' % (q[0] + c, q[0] + c, q[1] + c))
        p('v_add_f32 v%d, v%d, v%d' % (q[2] + c, q[2] + c, q[3] + c))
        p('v_add_f32 v%d, v%d, v%d' % (q[0] + c, q[0] + c, q[2] + c))
    p('v_add_f32 v%d, v%d, v%d' % (q[0], q[0], q[0] + 2)); p('v_add_f32 v%d, v%d, v%d' % (q[0] + 1, q[0] + 1, q[0] + 3))
    p('s_lshl_b32 s%d, s%d, 3' % (st, srb)); p('s_add_u32 s%d, s%d, s%d' % (st, st, sct)); p('s_lshl_b32 s%d, s%d, 9' % (st, st))
    p('s_add_u32 s%d, s%d, 0x%x' % (st, st, WS_X1ST))
    p('v_lshlrev_b32 v%d, 3, v%d' % (t0, vl))
    p('buffer_store_dwordx2 %s, v%d, %s, s%d offen' % (vr(q[0], 2), t0, sr(SWS, 4), st))
    p.label(Lnst)
    p('s_cmp_ge_u32 s2, 32'); p('s_cbranch_scc1 %s' % k.end)
    zf = k.v.alloc(4, 4)
    for j in range(4): p('v_mov_b32 v%d, 0' % (zf + j))
    Lz1 = k.L('z1')
    p('s_cmp_lg_u32 s%d, 0' % sw); p('s_cbranch_scc1 %s' % Lz1)
    p('v_lshlrev_b32 v%d, 4, v%d' % (t0, vl))
    p('ds_write_b128 v%d, %s offset:%d' % (t0, vr(zf, 4), LKV))
    p('s_waitcnt lgkmcnt(0)')
    p.label(Lz1)
    p('s_barrier')
    Lz2 = k.L('z2')
    p('s_cmp_ge_u32 s%d, 5' % sw); p('s_cbranch_scc1 %s' % Lz2)
    for i in range(8): p('v_add_f32 v%d, v%d, v%d' % (kvp[i], kvp[i], kvp[i + 8]))
    for i in range(4): p('v_add_f32 v%d, v%d, v%d' % (kvp[i], kvp[i], kvp[i + 4]))
    p('v_add_f32 v%d, v%d, v%d' % (kvp[0], kvp[0], kvp[1])); p('v_add_f32 v%d, v%d, v%d' % (kvp[2], kvp[2], kvp[3]))
    p('v_add_f32 v%d, v%d, v%d' % (kvp[0], kvp[0], kvp[2]))
    p('v_cvt_pk_bf16_f32 v%d, v%d, v%d' % (kvp[0], kvp[0], kvp[0]))
    a1 = k.v.alloc(); a2 = k.v.alloc(); d = k.v.alloc()
    p('v_lshrrev_b32 v%d, 3, v0' % t0)
    p('v_and_b32 v%d, 15, v%d' % (a1, t0)); p('v_lshrrev_b32 v%d, 4, v%d' % (t0, t0)); p('v_lshlrev_b32 v%d, 5, v%d' % (t0, t0))
    p('v_add_u32 v%d, v%d, v%d' % (a1, a1, t0)); p('v_lshlrev_b32 v%d, 4, v%d' % (a1, a1))
    p('v_and_b32 v%d, 7, v0' % t0); p('v_lshlrev_b32 v%d, 1, v%d' % (t0, t0)); p('v_add_u32 v%d, v%d, v%d' % (a1, a1, t0))
    Lzz = k.L('zz')
    p('s_cmp_eq_u32 s%d, 4' % sw); p('s_cbranch_scc1 %s' % Lzz)
    p('ds_write_b16 v%d, v%d offset:%d' % (a1, kvp[0], LKV))
    p('s_branch %s' % Lz2)
    p.label(Lzz)
    p('v_and_b32 v%d, 15, v0' % d)
    p('v_bfe_u32 v%d, v%d, 2, 1' % (a2, d)); p('v_lshlrev_b32 v%d, 5, v%d' % (a2, a2)); p('v_add_u32 v%d, 16, v%d' % (a2, a2)); p('v_lshlrev_b32 v%d, 4, v%d' % (a2, a2))
    p('v_lshrrev_b32 v%d, 3, v%d' % (t0, d)); p('v_lshlrev_b32 v%d, 2, v%d' % (t0, t0))
    p('v_and_b32 v%d, 3, v%d' % (t1, d)); p('v_add_u32 v%d, v%d, v%d' % (t0, t0, t1)); p('v_lshlrev_b32 v%d, 1, v%d' % (t0, t0))
    p('v_add_u32 v%d, v%d, v%d' % (a2, a2, t0))
    se = k.s.alloc(2, 2)
    p('v_cmp_gt_u32 vcc, 16, v%d' % vl)
    p('s_and_saveexec_b64 %s, vcc' % sr(se, 2))
    p('ds_write_b16 v%d, v%d offset:%d' % (a2, kvp[0], LKV))
    p('ds_write_b16 v%d, v%d offset:%d' % (a2, kvp[0], LKV + 64))
    p('s_mov_b64 exec, %s' % sr(se, 2))
    p.label(Lz2)
    p('s_waitcnt lgkmcnt(0)')
    p('s_barrier')
    p('s_cmp_lg_u32 s%d, 0' % sw); p('s_cbranch_scc1 %s' % k.end)
    p('v_lshlrev_b32 v%d, 4, v%d' % (t0, vl))
    p('ds_read_b128 %s, v%d offset:%d' % (vr(zf, 4), t0, LKV))
    p('s_lshl_b32 s%d, s2, 10' % st); p('s_add_u32 s%d, s%d, 0x%x' % (st, st, WS_KV))
    p('s_waitcnt lgkmcnt(0)')
    p('buffer_store_dwordx4 %s, v%d, %s, s%d offen' % (vr(zf, 4), t0, sr(SWS, 4), st))
    k.footer()
    return k

def kernel_C(nslots=4):
    k = Kern('kC_kernel', 256, nslots * 32768)
    p = k.p
    k.header()
    sp_w3 = k.s.alloc(2, 2); sp_ws = k.s.alloc(2, 2)
    p('s_load_dwordx2 %s, s[0:1], 48' % sr(sp_w3, 2))
    p('s_load_dwordx2 %s, s[0:1], 80' % sr(sp_ws, 2))
    vl, sw = lane_wave(k)
    sx = k.s.alloc(); sidx = k.s.alloc(); st = k.s.alloc(); st2 = k.s.alloc()
    p('s_and_b32 s%d, s2, 7' % sx); p('s_lshr_b32 s%d, s2, 3' % sidx)
    p('s_waitcnt lgkmcnt(0)')
    SWS = k.srd(sp_ws, WS_SIZE)
    Lo = k.L('owg')
    p('s_cmp_ge_u32 s%d, 28' % sidx); p('s_cbranch_scc1 %s' % Lo)
    SW = k.srd(sp_w3, 512 * 1792 * 2)
    srb = k.s.alloc(); sct = k.s.alloc(); smg = k.s.alloc(); sg = k.s.alloc()
    p('s_cmp_ge_u32 s%d, 14' % sidx)
    p('s_cselect_b32 s%d, 1, 0' % st)
    p('s_lshl_b32 s%d, s%d, 1' % (srb, sx)); p('s_add_u32 s%d, s%d, s%d' % (srb, srb, st))
    p('s_mul_i32 s%d, s%d, 14' % (st, st)); p('s_sub_u32 s%d, s%d, s%d' % (sct, sidx, st))
    p('s_lshr_b32 s%d, s%d, 1' % (smg, sw)); p('s_and_b32 s%d, s%d, 1' % (sg, sw))
    stq = [k.v.alloc(2, 2) for i in range(8)]
    Lns = k.L('ns')
    mk = k.v.mark()
    t0 = k.v.alloc(); t1 = k.v.alloc()
    p('s_cmp_ge_u32 s%d, 2' % sw); p('s_cbranch_scc1 %s' % Lns)
    p('v_lshlrev_b32 v%d, 3, v%d' % (t0, vl))
    p('s_lshl_b32 s%d, s%d, 1' % (st, srb)); p('s_add_u32 s%d, s%d, s%d' % (st, st, sw)); p('s_lshl_b32 s%d, s%d, 12' % (st, st))
    p('s_add_u32 s%d, s%d, 0x%x' % (st, st, WS_X1ST))
    for i in range(8):
        p('buffer_load_dwordx2 %s, v%d, %s, s%d offen offset:%d' % (vr(stq[i], 2), t0, sr(SWS, 4), st, i * 512))
    p.label(Lns)
    k.v.release(mk)
    sstride = k.s.alloc(); sbase = k.s.alloc(); sP1 = k.s.alloc(); sP2 = k.s.alloc()
    p('s_movk_i32 s%d, 3584' % sstride); p('s_lshl_b32 s%d, s%d, 8' % (sbase, sct)); p('s_movk_i32 s%d, 64' % sP1); p('s_movk_i32 s%d, 128' % sP2)
    vw = k.v.alloc()
    m = k.v.mark()
    vw_ = w_dma_voff_big(k, vl, sw, sstride, sbase, sP1, sP2)
    p('v_mov_b32 v%d, v%d' % (vw, vw_))
    k.v.release(m)
    vx = k.v.alloc()
    p('v_lshlrev_b32 v%d, 4, v%d' % (vx, vl))
    sxo = k.s.alloc(); sldsw = k.s.alloc(); sso = k.s.alloc(); swso = k.s.alloc()
    p('s_lshl_b32 s%d, s%d, 2' % (sxo, srb)); p('s_add_u32 s%d, s%d, s%d' % (sxo, sxo, smg)); p('s_lshl_b32 s%d, s%d, 5' % (sxo, sxo))
    p('s_lshl_b32 s%d, s%d, 1' % (st, sg)); p('s_add_u32 s%d, s%d, s%d' % (sxo, sxo, st))
    p('s_lshl_b32 s%d, s%d, 10' % (sxo, sxo)); p('s_add_u32 s%d, s%d, 0x%x' % (sxo, sxo, WS_X1))
    p('s_lshl_b32 s%d, s%d, 11' % (sldsw, sw))
    p('s_mov_b32 s%d, 0' % swso)
    def issue(stage, slot):
        for i in range(2):
            p('s_add_u32 m0, s%d, %d' % (sldsw, slot * 32768 + i * 1024))
            p('s_add_u32 s%d, s%d, %d' % (sso, sxo, stage * 4096 + i * 1024))
            p('buffer_load_dwordx4 v%d, %s, s%d offen lds' % (vx, sr(SWS, 4), sso))
        p('s_add_u32 m0, s%d, %d' % (sldsw, slot * 32768 + 16384))
        p('s_nop 0')
        p('buffer_load_dwordx4 v%d, %s, s%d offen lds' % (vw, sr(SW, 4), swso))
        p('s_add_u32 m0, s%d, %d' % (sldsw, slot * 32768 + 16384 + 1024))
        p('s_add_u32 s%d, s%d, %d' % (sso, swso, 4 * 3584))
        p('buffer_load_dwordx4 v%d, %s, s%d offen lds' % (vw, sr(SW, 4), sso))
        p('s_add_u32 s%d, s%d, %d' % (swso, swso, 64 * 3584))
    xa = [k.v.alloc() for s in range(4)]
    for s in range(4):
        p('s_xor_b32 s%d, s%d, %d' % (st, smg, s)); p('s_lshl_b32 s%d, s%d, 2' % (st2, smg)); p('s_add_u32 s%d, s%d, s%d' % (st, st, st2))
        p('s_lshl_b32 s%d, s%d, 10' % (st, st)); p('v_add_u32 v%d, s%d, v%d' % (xa[s], st, vx))
    wa = [[k.v.alloc() for f in range(2)] for s in range(4)]
    m = k.v.mark()
    wa_ = w_addr_big(k, vl, sg, smg, False)
    for s in range(4):
        for f in range(2): p('v_mov_b32 v%d, v%d' % (wa[s][f], wa_[s][f]))
    k.v.release(m)
    acc = [k.v.alloc(16, 4), k.v.alloc(16, 4)]
    for a in acc:
        for j in range(16): p('v_mov_b32 v%d, 0' % (a + j))
    cs = [k.v.alloc(), k.v.alloc()]; vones = k.v.alloc()
    for r in cs: p('v_mov_b32 v%d, 0' % r)
    p('v_mov_b32 v%d, 0x3f803f80' % vones)
    consts_gelu(k)
    mfr = k.v.mark()
    fr = [(k.v.alloc(4, 4), k.v.alloc(4, 4), k.v.alloc(4, 4)) for s in range(4)]
    big_gemm(k, 8, nslots, issue, xa, wa, False, False, acc, None, cs, vones, fr)
    k.v.release(mfr)
    L_CST = 4096; L_MR = 8192; L_CS = 10240
    p('s_barrier')
    m = k.v.mark()
    colsum_rowstat_exchange(k, vl, smg, sg, cs, L_CST)
    k.v.release(m)
    Lr = k.L('r')
    p('s_cmp_ge_u32 s%d, 2' % sw); p('s_cbranch_scc1 %s' % Lr)
    m = k.v.mark()
    om = k.v.alloc(2, 2); t0 = k.v.alloc(); t1 = k.v.alloc(); t2 = k.v.alloc(); a = k.v.alloc()
    for c in range(2):
        for i in range(4): p('v_add_f32 v%d, v%d, v%d' % (stq[i] + c, stq[i] + c, stq[i + 4] + c))
        p('v_add_f32 v%d, v%d, v%d' % (stq[0] + c, stq[0] + c, stq[1] + c)); p('v_add_f32 v%d, v%d, v%d' % (stq[2] + c, stq[2] + c, stq[3] + c))
        p('v_add_f32 v%d, v%d, v%d' % (stq[0] + c, stq[0] + c, stq[2] + c))
    stats_finalize(k, stq[0], stq[0] + 1, 512, om, om + 1, t0, t1, t2)
    p('v_lshlrev_b32 v%d, 3, v0' % a)
    p('ds_write_b64 v%d, %s offset:%d' % (a, vr(om, 2), L_MR))
    k.v.release(m)
    p.label(Lr)
    p('s_waitcnt lgkmcnt(0)')
    p('s_barrier')
    Lfin = k.L('fin')
    p('s_cmp_lt_u32 s%d, 2' % sw); p('s_cbranch_scc1 %s' % Lfin)
    p('s_cmp_ge_u32 s%d, 4' % sw); p('s_cbranch_scc1 %s' % Lfin)
    m = k.v.mark()
    a = k.v.alloc(); q = [k.v.alloc() for i in range(8)]
    p('v_subrev_u32 v%d, 128, v0' % a)
    p('v_lshlrev_b32 v%d, 2, v%d' % (a, a))
    for i in range(8): p('ds_read_b32 v%d, v%d offset:%d' % (q[i], a, L_CST + i * 512))
    p('s_waitcnt lgkmcnt(0)')
    for i in range(4): p('v_add_f32 v%d, v%d, v%d' % (q[i], q[i], q[i + 4]))
    p('v_add_f32 v%d, v%d, v%d' % (q[0], q[0], q[1])); p('v_add_f32 v%d, v%d, v%d' % (q[2], q[2], q[3]))
    p('v_add_f32 v%d, v%d, v%d' % (q[0], q[0], q[2]))
    p('ds_write_b32 v%d, v%d offset:%d' % (a, q[0], L_CS))
    k.v.release(m)
    p.label(Lfin)
    p('s_waitcnt lgkmcnt(0)')
    p('s_barrier')
    m = k.v.mark()
    a = k.v.alloc(); mr = k.v.alloc(2, 2); csv = [[k.v.alloc(4, 4) for i in range(4)] for f in range(2)]
    t0 = k.v.alloc()
    p('v_and_b32 v%d, 31, v%d' % (t0, vl))
    p('s_lshl_b32 s%d, s%d, 5' % (st, smg))
    p('v_add_u32 v%d, s%d, v%d' % (t0, st, t0))
    p('v_lshlrev_b32 v%d, 3, v%d' % (a, t0))
    p('ds_read_b64 %s, v%d offset:%d' % (vr(mr, 2), a, L_MR))
    p('v_lshrrev_b32 v%d, 5, v%d' % (t0, vl))
    p('v_lshlrev_b32 v%d, 4, v%d' % (t0, t0))
    p('s_lshl_b32 s%d, s%d, 8' % (st, sg))
    p('v_add_u32 v%d, s%d, v%d' % (a, st, t0))
    for f in range(2):
        for i in range(4):
            p('ds_read_b128 %s, v%d offset:%d' % (vr(csv[f][i], 4), a, L_CS + f * 128 + i * 32))
    p('s_waitcnt lgkmcnt(0)')
    tmp = [k.v.alloc() for i in range(16)]
    pk = [k.v.alloc(4, 4) for i in range(2)]
    vst = k.v.alloc(); sdst = k.s.alloc()
    p('v_lshlrev_b32 v%d, 4, v%d' % (vst, vl))
    p('s_lshl_b32 s%d, s%d, 2' % (sdst, srb)); p('s_add_u32 s%d, s%d, s%d' % (sdst, sdst, smg)); p('s_mul_i32 s%d, s%d, 112' % (sdst, sdst))
    p('s_lshl_b32 s%d, s%d, 3' % (st, sct)); p('s_add_u32 s%d, s%d, s%d' % (sdst, sdst, st))
    p('s_lshl_b32 s%d, s%d, 2' % (st, sg)); p('s_add_u32 s%d, s%d, s%d' % (sdst, sdst, st))
    p('s_lshl_b32 s%d, s%d, 10' % (sdst, sdst)); p('s_add_u32 s%d, s%d, 0x%x' % (sdst, sdst, WS_ACT))
    for f in range(2):
        for i in range(4):
            for r in range(4):
                R = acc[f] + 4 * i + r
                p('v_fma_f32 v%d, -v%d, v%d, v%d' % (R, mr, csv[f][i] + r, R))
        for j in range(16): p('v_mul_f32 v%d, v%d, v%d' % (acc[f] + j, acc[f] + j, mr + 1))
        gelu_multi(k, [acc[f] + j for j in range(16)], tmp)
        for h in range(2):
            P = pk[h]
            for j in range(4):
                p('v_cvt_pk_bf16_f32 v%d, v%d, v%d' % (P + j, acc[f] + 8 * h + 2 * j, acc[f] + 8 * h + 2 * j + 1))
            p('s_add_u32 s%d, s%d, %d' % (st, sdst, (2 * f + h) * 1024))
            p('buffer_store_dwordx4 %s, v%d, %s, s%d offen' % (vr(P, 4), vst, sr(SWS, 4), st))
    p('s_branch %s' % k.end)
    k.v.release(m)
    p.label(Lo)
    save_hi = k.v.n
    k.v.n = 2 + 0
    k.v.alloc()
    vo = k.v.alloc()
    p('v_lshlrev_b32 v%d, 4, v%d' % (vo, vl))
    smb = k.s.alloc(); sh = k.s.alloc()
    p('s_sub_u32 s%d, s%d, 28' % (smb, sidx)); p('s_lshl_b32 s%d, s%d, 2' % (st, sx)); p('s_add_u32 s%d, s%d, s%d' % (smb, smb, st))
    p('s_lshl_b32 s%d, s%d, 1' % (smb, smb)); p('s_and_b32 s%d, s%d, 1' % (st, sw)); p('s_add_u32 s%d, s%d, s%d' % (smb, smb, st))
    p('s_lshr_b32 s%d, s%d, 1' % (sh, sw)); p('s_lshl_b32 s%d, s%d, 3' % (sh, sh))
    sblk = k.s.alloc(); skv = k.s.alloc()
    p('s_lshl_b32 s%d, s%d, 5' % (sblk, smb)); p('s_add_u32 s%d, s%d, s%d' % (sblk, sblk, sh)); p('s_lshl_b32 s%d, s%d, 10' % (sblk, sblk))
    p('s_lshl_b32 s%d, s%d, 10' % (skv, sh)); p('s_add_u32 s%d, s%d, 0x%x' % (skv, skv, WS_KV))
    pq = [k.v.alloc(4, 4) for i in range(8)]; kv = [k.v.alloc(4, 4) for i in range(8)]
    for i in range(8):
        p('s_add_u32 s%d, s%d, 0x%x' % (st, sblk, WS_PQ + i * 1024))
        p('buffer_load_dwordx4 %s, v%d, %s, s%d offen' % (vr(pq[i], 4), vo, sr(SWS, 4), st))
        p('s_add_u32 s%d, s%d, %d' % (st, skv, i * 1024))
        p('buffer_load_dwordx4 %s, v%d, %s, s%d offen' % (vr(kv[i], 4), vo, sr(SWS, 4), st))
    D = [k.v.alloc(16, 4) for i in range(2)]
    pk = [k.v.alloc(4, 4) for i in range(2)]
    den = k.v.alloc()
    for i in range(8):
        d = D[i & 1]
        for j in range(16): p('v_mov_b32 v%d, 0' % (d + j))
        p('s_waitcnt vmcnt(%d)' % max(0, 14 - 2 * i))
        p('v_mfma_f32_32x32x16_bf16 %s, %s, %s, %s' % (vr(d, 16), vr(kv[i], 4), vr(pq[i], 4), vr(d, 16)))
        k.round_bf16(den, d + 8, d + 9)
        p('v_add_f32 v%d, %s, v%d' % (den, fl(1e-6), den))
        k.round_bf16(den, den, d + 9)
        p('v_rcp_f32 v%d, v%d' % (den, den))
        P = pk[i & 1]
        for j in range(4): p('v_cvt_pk_bf16_f32 v%d, v%d, v%d' % (P + j, d + 2 * j, d + 2 * j + 1))
        for j in range(4):
            p('v_lshlrev_b32 v%d, 16, v%d' % (d + 2 * j, P + j))
            p('v_and_b32 v%d, 0xffff0000, v%d' % (d + 2 * j + 1, P + j))
        for j in range(8): p('v_mul_f32 v%d, v%d, v%d' % (d + j, d + j, den))
        for j in range(4): p('v_cvt_pk_bf16_f32 v%d, v%d, v%d' % (P + j, d + 2 * j, d + 2 * j + 1))
        p('s_add_u32 s%d, s%d, 0x%x' % (st, sblk, WS_O + i * 1024))
        p('buffer_store_dwordx4 %s, v%d, %s, s%d offen' % (vr(P, 4), vo, sr(SWS, 4), st))
    k.footer()
    return k

def kernel_D(nslots=4):
    k = Kern('kD_kernel', 256, nslots * 32768)
    p = k.p
    k.header()
    sp_x = k.s.alloc(2, 2); sp_wo = k.s.alloc(2, 2); sp_w4 = k.s.alloc(2, 2); sp_out = k.s.alloc(2, 2); sp_ws = k.s.alloc(2, 2)
    p('s_load_dwordx2 %s, s[0:1], 0' % sr(sp_x, 2))
    p('s_load_dwordx2 %s, s[0:1], 16' % sr(sp_wo, 2))
    p('s_load_dwordx2 %s, s[0:1], 56' % sr(sp_w4, 2))
    p('s_load_dwordx2 %s, s[0:1], 64' % sr(sp_out, 2))
    p('s_load_dwordx2 %s, s[0:1], 80' % sr(sp_ws, 2))
    vl, sw = lane_wave(k)
    srb, sct = rb64_ct(k)
    skg, smi, sni, xa, wa = small_setup(k, vl, sw)
    vwd = small_wdma_voff(k, vl, sct)
    st = k.s.alloc(); st2 = k.s.alloc()
    vx = k.v.alloc()
    p('v_lshlrev_b32 v%d, 4, v%d' % (vx, vl))
    p('s_waitcnt lgkmcnt(0)')
    SX = k.srd(sp_x, 0x200000); SWO = k.srd(sp_wo, 0x80000); SW4 = k.srd(sp_w4, 1792 * 1024)
    SOUT = k.srd(sp_out, 0x200000); SWS = k.srd(sp_ws, WS_SIZE)
    x1p = k.v.alloc(4, 4); xr = k.v.alloc(4, 4); vout = k.v.alloc()
    p('s_lshl_b32 s%d, s%d, 1' % (st, srb)); p('s_add_u32 s%d, s%d, s%d' % (st, st, smi)); p('s_lshl_b32 s%d, s%d, 5' % (st, st))
    p('s_lshl_b32 s%d, s%d, 2' % (st2, sct)); p('s_add_u32 s%d, s%d, s%d' % (st, st, st2))
    p('s_lshl_b32 s%d, s%d, 1' % (st2, sni)); p('s_add_u32 s%d, s%d, s%d' % (st, st, st2))
    p('s_add_u32 s%d, s%d, s%d' % (st, st, skg))
    p('s_lshl_b32 s%d, s%d, 10' % (st, st)); p('s_add_u32 s%d, s%d, 0x%x' % (st, st, WS_X1))
    p('buffer_load_dwordx4 %s, v%d, %s, s%d offen' % (vr(x1p, 4), vx, sr(SWS, 4), st))
    m = k.v.mark(); t0 = k.v.alloc()
    p('v_lshrrev_b32 v%d, 3, v0' % vout); p('s_lshl_b32 s%d, s%d, 6' % (st, srb)); p('v_add_u32 v%d, s%d, v%d' % (vout, st, vout))
    p('v_lshlrev_b32 v%d, 10, v%d' % (vout, vout))
    p('v_and_b32 v%d, 7, v0' % t0); p('v_lshlrev_b32 v%d, 4, v%d' % (t0, t0)); p('v_add_u32 v%d, v%d, v%d' % (vout, vout, t0))
    p('s_lshl_b32 s%d, s%d, 7' % (st, sct)); p('v_add_u32 v%d, s%d, v%d' % (vout, st, vout))
    k.v.release(m)
    p('buffer_load_dwordx4 %s, v%d, %s, 0 offen' % (vr(xr, 4), vout, sr(SX, 4)))
    sl = k.s.alloc(); sso = k.s.alloc(); sact = k.s.alloc(); so = k.s.alloc(); swk = k.s.alloc()
    p('s_lshl_b32 s%d, s%d, 11' % (sl, sw))
    p('s_lshl_b32 s%d, s%d, 1' % (st, srb)); p('s_add_u32 s%d, s%d, s%d' % (st, st, skg))
    p('s_lshl_b32 s%d, s%d, 1' % (st2, sw)); p('s_and_b32 s%d, s%d, 7' % (st2, st2))
    p('s_mul_i32 s%d, s%d, 112' % (sact, st)); p('s_add_u32 s%d, s%d, s%d' % (sact, sact, st2)); p('s_lshl_b32 s%d, s%d, 10' % (sact, sact))
    p('s_add_u32 s%d, s%d, 0x%x' % (sact, sact, WS_ACT))
    p('s_lshl_b32 s%d, s%d, 5' % (so, st)); p('s_add_u32 s%d, s%d, s%d' % (so, so, st2)); p('s_lshl_b32 s%d, s%d, 10' % (so, so))
    p('s_add_u32 s%d, s%d, 0x%x' % (so, so, WS_O))
    p('s_lshl_b32 s%d, s%d, 14' % (swk, sw))
    NST = 18
    def issue(stage, slot):
        if stage < 4:
            xs, t, SWx = so, stage, SWO
        else:
            xs, t, SWx = sact, stage - 4, SW4
        for i in range(2):
            p('s_add_u32 m0, s%d, %d' % (sl, slot * 32768 + i * 1024))
            p('s_add_u32 s%d, s%d, %d' % (sso, xs, t * 8192 + i * 1024))
            p('buffer_load_dwordx4 v%d, %s, s%d offen lds' % (vx, sr(SWS, 4), sso))
        for i in range(2):
            p('s_add_u32 m0, s%d, %d' % (sl, slot * 32768 + 16384 + i * 1024))
            p('s_add_u32 s%d, s%d, %d' % (sso, swk, t * 131072 + i * 8192))
            p('buffer_load_dwordx4 v%d, %s, s%d offen lds' % (vwd, sr(SWx, 4), sso))
    accs = k.v.alloc(16, 4); acch = k.v.alloc(16, 4)
    for j in range(16): p('v_mov_b32 v%d, 0' % (accs + j)); p('v_mov_b32 v%d, 0' % (acch + j))
    mfr = k.v.mark()
    fr = [(k.v.alloc(4, 4), k.v.alloc(4, 4)) for s in range(4)]
    A = AddrSet(k, [xa, wa])
    depth = nslots - 1
    n = 0
    for t in range(depth): issue(t, t % nslots); n += 1
    for t in range(NST):
        p('s_waitcnt vmcnt(%d)' % ((n - t - 1) * 4))
        p('s_barrier')
        if n < NST: issue(n, n % nslots); n += 1
        small_compute(k, A, (t % nslots) * 32768, xa, wa, accs if t < 4 else acch, fr)
    k.v.release(mfr)
    hh = k.v.alloc(8, 4); ss = k.v.alloc(8, 4)
    p('s_barrier')
    kgroup_exchange(k, vl, sw, skg, [acch, accs], 0, [hh, ss])
    xf = k.v.alloc(8, 4); pk = k.v.alloc(4, 4); tm = k.v.alloc(8, 4); t0 = k.v.alloc(); t1 = k.v.alloc()
    def rnd8(r):
        for j in range(4): p('v_cvt_pk_bf16_f32 v%d, v%d, v%d' % (pk + j, r + 2 * j, r + 2 * j + 1))
        for j in range(4):
            p('v_lshlrev_b32 v%d, 16, v%d' % (r + 2 * j, pk + j))
            p('v_and_b32 v%d, 0xffff0000, v%d' % (r + 2 * j + 1, pk + j))
    for j in range(4):
        p('v_lshlrev_b32 v%d, 16, v%d' % (xf + 2 * j, x1p + j))
        p('v_and_b32 v%d, 0xffff0000, v%d' % (xf + 2 * j + 1, x1p + j))
    rnd8(hh); rnd8(ss)
    for j in range(8): p('v_add_f32 v%d, v%d, v%d' % (xf + j, xf + j, hh + j))
    rnd8(xf)
    for j in range(8): p('v_mul_f32 v%d, %s, v%d' % (tm + j, fl(-LOG2E), xf + j))
    for j in range(8): p('v_exp_f32 v%d, v%d' % (tm + j, tm + j))
    for j in range(8): p('v_add_f32 v%d, 1.0, v%d' % (tm + j, tm + j))
    for j in range(8): p('v_rcp_f32 v%d, v%d' % (tm + j, tm + j))
    for j in range(8): p('v_mul_f32 v%d, v%d, v%d' % (xf + j, xf + j, tm + j))
    rnd8(xf)
    for j in range(8): p('v_mul_f32 v%d, v%d, v%d' % (xf + j, xf + j, ss + j))
    for j in range(4): p('v_cvt_pk_bf16_f32 v%d, v%d, v%d' % (pk + j, xf + 2 * j, xf + 2 * j + 1))
    LT = 40960
    p('v_and_b32 v%d, 31, v%d' % (t0, vl)); p('s_lshl_b32 s%d, s%d, 5' % (st, smi)); p('v_add_u32 v%d, s%d, v%d' % (t0, st, t0))
    p('v_mul_u32_u24 v%d, 144, v%d' % (t0, t0))
    p('s_lshl_b32 s%d, s%d, 6' % (st, sni)); p('s_lshl_b32 s%d, s%d, 5' % (st2, skg)); p('s_add_u32 s%d, s%d, s%d' % (st, st, st2))
    p('v_add_u32 v%d, s%d, v%d' % (t0, st, t0))
    p('v_lshrrev_b32 v%d, 5, v%d' % (t1, vl)); p('v_lshlrev_b32 v%d, 3, v%d' % (t1, t1)); p('v_add_u32 v%d, v%d, v%d' % (t0, t0, t1))
    p('ds_write_b64 v%d, %s offset:%d' % (t0, vr(pk, 2), LT))
    p('ds_write_b64 v%d, %s offset:%d' % (t0, vr(pk + 2, 2), LT + 16))
    p('s_waitcnt lgkmcnt(0)')
    p('s_barrier')
    p('v_lshrrev_b32 v%d, 3, v0' % t0); p('v_mul_u32_u24 v%d, 144, v%d' % (t0, t0))
    p('v_and_b32 v%d, 7, v0' % t1); p('v_lshlrev_b32 v%d, 4, v%d' % (t1, t1)); p('v_add_u32 v%d, v%d, v%d' % (t0, t0, t1))
    p('ds_read_b128 %s, v%d offset:%d' % (vr(pk, 4), t0, LT))
    p('s_waitcnt lgkmcnt(0)')
    for j in range(4):
        p('v_lshlrev_b32 v%d, 16, v%d' % (tm + 2 * j, pk + j))
        p('v_and_b32 v%d, 0xffff0000, v%d' % (tm + 2 * j + 1, pk + j))
        p('v_lshlrev_b32 v%d, 16, v%d' % (xf + 2 * j, xr + j))
        p('v_and_b32 v%d, 0xffff0000, v%d' % (xf + 2 * j + 1, xr + j))
    for j in range(8): p('v_add_f32 v%d, v%d, v%d' % (xf + j, xf + j, tm + j))
    for j in range(4): p('v_cvt_pk_bf16_f32 v%d, v%d, v%d' % (pk + j, xf + 2 * j, xf + 2 * j + 1))
    p('buffer_store_dwordx4 %s, v%d, %s, 0 offen' % (vr(pk, 4), vout, sr(SOUT, 4)))
    k.footer()
    return k

def build(kernels, extra_hdr=''):
    hdr = open('cdna_kernels/%s.s.ref' % KN).read().split('; Override launch')[0]
    s = hdr
    for k in kernels:
        s += '; @launch kernel=%s grid=(%d,1,1) block=(%d,1,1) lds=%d\n' % (k.name, k.nwg, k.threads, k.lds)
    s += '.amdgcn_target "amdgcn-amd-amdhsa--gfx950"\n.text\n'
    for k in kernels: s += k.p.finish()
    s += '.section .rodata,"a"\n'
    for k in kernels: s += k.desc()
    return s

if __name__ == '__main__':
    out = sys.argv[1] if len(sys.argv) > 1 else 'cdna_kernels/%s.s' % KN
    ks = [kernel_A(), kernel_B(), kernel_C(), kernel_D()]
    open(out, 'w').write(build(ks))
    for k in ks: print(k.name, 'vgprs', k.v.hi, 'sgprs', k.s.hi, 'lds', k.lds)
```
